```python
import torch

def _softmax(x, axis=-1):
    return torch.softmax(x, dim=axis)
def _gelu(x):
    return torch.nn.functional.gelu(x, approximate="tanh")
def _silu(x):
    return torch.nn.functional.silu(x)
def _sigmoid(x):
    return torch.sigmoid(x)
def _layernorm(x, axis=-1, eps=1e-5):
    m = x.mean(dim=axis, keepdim=True)
    v = x.var(dim=axis, keepdim=True, unbiased=False)
    return (x - m) / torch.sqrt(v + eps)
def _scatter_add(tgt, idx, src, axis=0):
    return tgt.clone().index_add_(axis, idx, src)
def _segment_sum(src, seg, n):
    out = torch.zeros((n,) + src.shape[1:], dtype=src.dtype)
    return out.index_add_(0, seg, src)
def _pad(x, pw):
    flat = tuple(v for pair in reversed(pw) for v in pair)
    return torch.nn.functional.pad(x, flat)

kernel_name = 'gated_mix__ssm_conv_s5__glu_gated_glu__prompt'

def setup_inputs():

    _w = (lambda a: (lambda t: t.to(torch.bfloat16) if t.is_floating_point() else t)(torch.as_tensor(a)))
    def _A_setup():
        B, S, D = 1, 2048, 512
        P = D
        Lambda_re = -0.5 * (lambda _x: torch.exp(torch.as_tensor(_x)))((lambda *s: torch.randn(*s, dtype=torch.bfloat16) * 0.4)(P))
        Lambda_im = (lambda *s: torch.randn(*s, dtype=torch.bfloat16) * 0.8)(P) * 1.0
        B_re = (lambda *s: torch.randn(*s, dtype=torch.bfloat16) * 0.8)(P, D) * (D ** -0.5)
        B_im = (lambda *s: torch.randn(*s, dtype=torch.bfloat16) * 0.8)(P, D) * (D ** -0.5)
        C_re = (lambda *s: torch.randn(*s, dtype=torch.bfloat16) * 0.8)(D, P) * (P ** -0.5)
        C_im = (lambda *s: torch.randn(*s, dtype=torch.bfloat16) * 0.8)(D, P) * (P ** -0.5)
        log_dt = (lambda *s: torch.randn(*s, dtype=torch.bfloat16) * 0.4)(P) * 0.3 - 2.0
        Dskip = (lambda *s: torch.randn(*s, dtype=torch.bfloat16) * 0.1)(D)
        return {
            "x": _w((lambda *s: torch.randn(*s, dtype=torch.bfloat16) * 0.05)(B, S, D)),
            "Lambda_re": _w(Lambda_re),
            "Lambda_im": _w(Lambda_im),
            "B_re": _w(B_re),
            "B_im": _w(B_im),
            "C_re": _w(C_re),
            "C_im": _w(C_im),
            "log_dt": _w(log_dt),
            "Dskip": _w(Dskip),
        }
    _A_in = _A_setup()

    def _B_setup():
        B, S, D, F = 1, 2048, 512, 1792
        return {
            "x": _w((lambda *s: torch.randn(*s, dtype=torch.bfloat16) * 0.05)(B, S, D)),
            "w_gate": _w((lambda *s: torch.randn(*s, dtype=torch.bfloat16) * 0.4)(D, F)),
            "w_up": _w((lambda *s: torch.randn(*s, dtype=torch.bfloat16) * 0.05)(D, F)),
            "w_down": _w((lambda *s: torch.randn(*s, dtype=torch.bfloat16) * 0.05)(F, D)),
        }
    _B_in = _B_setup()

    return {
        "A_x": _A_in["x"],
        "A_Lambda_re": _A_in["Lambda_re"],
        "A_Lambda_im": _A_in["Lambda_im"],
        "A_B_re": _A_in["B_re"],
        "A_B_im": _A_in["B_im"],
        "A_C_re": _A_in["C_re"],
        "A_C_im": _A_in["C_im"],
        "A_log_dt": _A_in["log_dt"],
        "A_Dskip": _A_in["Dskip"],
        "B_x": _B_in["x"],
        "B_w_gate": _B_in["w_gate"],
        "B_w_up": _B_in["w_up"],
        "B_w_down": _B_in["w_down"],
        "gate_w": _w((lambda *s: torch.randn(*s, dtype=torch.bfloat16) * 0.05)(512) * 16.0),
    }

def reference(A_x, A_Lambda_re, A_Lambda_im, A_B_re, A_B_im, A_C_re, A_C_im, A_log_dt, A_Dskip, B_x, B_w_gate, B_w_up, B_w_down, gate_w):
    def _A_ref(x, Lambda_re, Lambda_im, B_re, B_im, C_re, C_im, log_dt, Dskip):
        Bsz, L, H = x.shape
        Lam = Lambda_re + 1j * Lambda_im
        Bmat = B_re + 1j * B_im
        Cmat = C_re + 1j * C_im
        dt = torch.exp(log_dt)
        Lam_bar = torch.exp(dt * Lam)
        B_bar = ((Lam_bar - 1.0) / Lam)[:, None] * Bmat
        Bu = torch.einsum("bld,pd->blp", x + 0j, B_bar)
        h = torch.zeros_like(Bu[:, 0, :])
        hs = []
        for t in range(L):
            h = Lam_bar[None, :] * h + Bu[:, t, :]
            hs.append(h)
        hseq = torch.stack(hs, 1)
        y = 2.0 * torch.einsum("blp,dp->bld", hseq, Cmat).real + x * Dskip[None, None, :]
        return y

    def _B_ref(x, w_gate, w_up, w_down):
        g = torch.einsum("bsd,df->bsf", x, w_gate)
        u = torch.einsum("bsd,df->bsf", x, w_up)
        h = _sigmoid(g) * u
        return torch.einsum("bsf,fd->bsd", h, w_down)

    x = A_x
    g = _sigmoid((x * gate_w).sum(-1, keepdims=True))
    a = _A_ref(x, A_Lambda_re, A_Lambda_im, A_B_re, A_B_im, A_C_re, A_C_im, A_log_dt, A_Dskip)
    b = _B_ref(x, B_w_gate, B_w_up, B_w_down)
    return g * a + (1 - g) * b
```

```python
class Asm:
    def __init__(self):
        self.lines = []
        self.vm = []
        self.lg = []
        self.fill_q = []
        self.nins = 0

    def __call__(self, s):
        self.lines.append("    " + s)
        self.nins += 1

    def label(self, s):
        self.lines.append(s + ":")

    def comment(self, s):
        self.lines.append("    ; " + s)

    def raw(self, s):
        self.lines.append(s)

    def vmem(self, s, tag):
        self(s)
        self.vm.append(tag)

    def ds(self, s, tag):
        self(s)
        self.lg.append(tag)

    def wait_vm(self, tag, force=False):
        idx = max((i for i, t in enumerate(self.vm) if t == tag), default=None)
        if idx is None:
            return
        n = len(self.vm) - 1 - idx
        assert n <= 63, n
        self(f"s_waitcnt vmcnt({n})")
        self.vm = self.vm[idx + 1:]

    def wait_lg(self, tag):
        idx = max((i for i, t in enumerate(self.lg) if t == tag), default=None)
        if idx is None:
            return
        n = len(self.lg) - 1 - idx
        assert n <= 15, n
        self(f"s_waitcnt lgkmcnt({n})")
        self.lg = self.lg[idx + 1:]

    def wait_lg_all(self):
        if self.lg:
            self("s_waitcnt lgkmcnt(0)")
            self.lg = []

    def wait_vm_all(self):
        self("s_waitcnt vmcnt(0)")
        self.vm = []

    def q(self, *items):
        self.fill_q.extend(items)

    def fill(self, n):
        for _ in range(n):
            if not self.fill_q:
                return
            it = self.fill_q.pop(0)
            if callable(it):
                it()
            else:
                self(it)

    def flush(self):
        while self.fill_q:
            self.fill(1)

    def text(self):
        return "\n".join(self.lines)


def vr(b, n=1):
    return f"v{b}" if n == 1 else f"v[{b}:{b + n - 1}]"


def ar(b, n=1):
    return f"a{b}" if n == 1 else f"a[{b}:{b + n - 1}]"


def sr(b, n=1):
    return f"s{b}" if n == 1 else f"s[{b}:{b + n - 1}]"
```

```python
import sys
from asmlib import Asm, vr, ar, sr

CFG = dict(
    fillA0=3, fillA1=1, fillB0=4, fillB1=4,
    ring=13,
    st_flag="",
    stamp=0,
)
for a in sys.argv[1:]:
    k, v = a.split("=")
    CFG[k] = type(CFG[k])(v) if not isinstance(CFG[k], str) else v

KS = 176
A2_OFF = 0
W2_OFF = 12 << 20
G_OFF = 16 << 20
T_OFF = 17 << 20
STAMP_OFF = 18 << 20
WS_BYTES = 20 << 20

SLOT = 37120
PAIR = 2 * SLOT
MISC = 4 * SLOT
WD_STAGE = MISC
E_AREA = MISC + 8192
K1_LDS = E_AREA + 4096
assert K1_LDS <= 163840

LOG2E = 0x3FB8AA3B
NLOG2E = 0xBFB8AA3B

hdr = open("gated_mix__ssm_conv_s5__glu_gated_glu__prompt.s.ref").read().split("; Override")[0]

P_X, P_LRE, P_LIM, P_BRE, P_BIM, P_CRE, P_CIM, P_LDT = 8, 10, 12, 14, 16, 18, 20, 22
P_DSK, P_BX, P_WG, P_WU, P_WD, P_GW, P_OUT, P_DBG, P_WS = 24, 26, 28, 30, 32, 34, 36, 38, 40
S_RB, S_CB, S_W = 5, 6, 7
S_RW, S_CW = 42, 43
SX, SBM, SWG, SWU, SWA2, SWS, ST, SDBG, ST1, ST2, ST3, ST4 = 44, 48, 52, 56, 60, 64, 68, 72, 76, 80, 84, 88
S_SO, S_NL2E, S_A2S, S_A2G, S_MX, S_MBM, S_MWA, S_T0, S_T1, S_T2 = 92, 93, 94, 95, 96, 97, 98, 99, 100, 101
S_T3, S_T4 = 3, 4


def srd(e, d, p, nbytes):
    e(f"s_mov_b32 s{d}, s{p}")
    e(f"s_mov_b32 s{d + 1}, s{p + 1}")
    e(f"s_mov_b32 s{d + 2}, {nbytes:#x}")
    e(f"s_mov_b32 s{d + 3}, 0x00020000")


def stamp(e, idx, wave_s, tmpv0, tmpv1, srdreg, wg_s="s2"):
    if not CFG["stamp"]:
        return
    e("s_memtime s[0:1]")
    e("s_waitcnt lgkmcnt(0)")
    e.lg = []
    e(f"s_lshl_b32 s{S_T0}, {wg_s}, 3")
    e(f"s_add_u32 s{S_T0}, s{S_T0}, {wave_s}")
    e(f"s_lshl_b32 s{S_T0}, s{S_T0}, 7")
    e(f"s_add_u32 s{S_T0}, s{S_T0}, {STAMP_OFF + idx * 4:#x}")
    e(f"v_mov_b32 v{tmpv0}, s0")
    e(f"v_mov_b32 v{tmpv1}, 0")
    e.vmem(f"buffer_store_dword v{tmpv0}, v{tmpv1}, {sr(srdreg, 4)}, s{S_T0} offen", "stamp")


def gen_k1():
    e = Asm()
    e.raw(".globl k1_kernel\n.p2align 8\n.type k1_kernel,@function\nk1_kernel:")
    e("s_cmp_ge_u32 s2, 256")
    e("s_cbranch_scc1 K1_END")
    e("s_load_dwordx16 s[8:23], s[0:1], 0")
    e("s_load_dwordx16 s[24:39], s[0:1], 64")
    e("s_load_dwordx2 s[40:41], s[0:1], 128")
    V_LANE, V_I, V_POS = 1, 2, 3
    V_DX0, V_DX1, V_DBM, V_DWA, V_DWBG, V_DWBU = 4, 5, 6, 7, 8, 9
    V_XA = 10
    V_ST = 14
    V_WB = 15
    V_WA = 17
    V_BA = 17
    T0, T1, T2, T3 = 120, 121, 122, 123
    e(f"v_lshrrev_b32 v{T0}, 6, v0")
    e(f"v_and_b32 v{V_LANE}, 63, v0")
    e(f"s_and_b32 s{S_T3}, s2, 7")
    e(f"v_readfirstlane_b32 s{S_W}, v{T0}")
    e(f"s_lshr_b32 s{S_T4}, s2, 3")
    e(f"s_lshr_b32 s{S_RB}, s{S_T3}, 1")
    e(f"s_lshl_b32 s{S_RB}, s{S_RB}, 2")
    e(f"s_lshr_b32 s{S_T0}, s{S_T4}, 3")
    e(f"s_add_u32 s{S_RB}, s{S_RB}, s{S_T0}")
    e(f"s_and_b32 s{S_CB}, s{S_T3}, 1")
    e(f"s_lshl_b32 s{S_CB}, s{S_CB}, 3")
    e(f"s_and_b32 s{S_T0}, s{S_T4}, 7")
    e(f"s_add_u32 s{S_CB}, s{S_CB}, s{S_T0}")
    e(f"s_and_b32 s{S_RW}, s{S_W}, 3")
    e(f"s_lshr_b32 s{S_CW}, s{S_W}, 2")
    e(f"v_lshrrev_b32 v{V_I}, 3, v{V_LANE}")
    e(f"v_and_b32 v{V_POS}, 7, v{V_LANE}")
    e(f"s_lshl_b32 s{S_T0}, s{S_RB}, 17")
    e(f"s_lshr_b32 s{S_T1}, s{S_W}, 1")
    e(f"s_lshl_b32 s{S_T1}, s{S_T1}, 15")
    e(f"s_add_u32 s{S_T0}, s{S_T0}, s{S_T1}")
    e(f"s_and_b32 s{S_T1}, s{S_W}, 1")
    e(f"s_lshl_b32 s{S_T2}, s{S_T1}, 13")
    e(f"s_add_u32 s{S_T0}, s{S_T0}, s{S_T2}")
    e(f"v_lshrrev_b32 v{T0}, 1, v{V_I}")
    e(f"v_xor_b32 v{T1}, v{V_POS}, v{T0}")
    e(f"v_lshlrev_b32 v{T1}, 4, v{T1}")
    e(f"v_lshrrev_b32 v{T2}, 2, v{V_I}")
    e(f"v_lshlrev_b32 v{T2}, 14, v{T2}")
    e(f"v_and_b32 v{T3}, 3, v{V_I}")
    e(f"v_lshl_add_u32 v{T2}, v{T3}, 10, v{T2}")
    e(f"v_add3_u32 v{V_DX0}, v{T2}, v{T1}, s{S_T0}")
    e(f"v_xor_b32 v{V_DX1}, 64, v{V_DX0}")
    e(f"v_add_u32 v{V_DX1}, 0x1000, v{V_DX1}")
    e(f"s_lshl_b32 s{S_T2}, s{S_T1}, 6")
    e(f"v_xor_b32 v{T1}, s{S_T2}, v{T1}")
    e(f"s_lshl_b32 s{S_T0}, s{S_CB}, 15")
    e(f"s_lshl_b32 s{S_T2}, s{S_RW}, 13")
    e(f"s_add_u32 s{S_T0}, s{S_T0}, s{S_T2}")
    e(f"v_lshl_add_u32 v{V_DBM}, v{V_I}, 10, v{T1}")
    e(f"v_add_u32 v{V_DBM}, s{S_T0}, v{V_DBM}")
    e(f"s_and_b32 s{S_T0}, s{S_RW}, 1")
    e(f"s_add_u32 s{S_T0}, s{S_T0}, 4")
    e(f"s_cmp_eq_u32 s{S_CW}, 0")
    e(f"s_cselect_b32 s{S_T0}, s{S_RW}, s{S_T0}")
    e(f"s_lshl_b32 s{S_T1}, s{S_T0}, 6")
    e(f"v_add_u32 v{T0}, s{S_T1}, v{V_LANE}")
    e(f"v_mul_u32_u24 v{T1}, 43691, v{T0}")
    e(f"v_lshrrev_b32 v{T1}, 18, v{T1}")
    e(f"v_mul_u32_u24 v{T2}, 6, v{T1}")
    e(f"v_sub_u32 v{T2}, v{T0}, v{T2}")
    e(f"v_mul_u32_u24 v{T1}, 3584, v{T1}")
    e(f"v_lshl_add_u32 v{T1}, v{T2}, 4, v{T1}")
    e(f"s_mul_i32 s{S_T1}, s{S_CB}, 96")
    e(f"s_add_u32 s{S_T1}, s{S_T1}, 2048")
    e(f"v_add_u32 v{V_DWA}, s{S_T1}, v{T1}")
    e(f"s_lshl_b32 s{S_MX}, s{S_W}, 11")
    e(f"s_lshl_b32 s{S_MBM}, s{S_W}, 10")
    e(f"s_add_u32 s{S_MBM}, s{S_MBM}, 16384")
    e(f"s_lshl_b32 s{S_MWA}, s{S_T0}, 10")
    e(f"s_lshr_b32 s{S_T1}, s{S_RW}, 1")
    e(f"s_mul_i32 s{S_T1}, s{S_T1}, 6272")
    e(f"s_mul_i32 s{S_T1}, s{S_T1}, s{S_CW}")
    e(f"s_add_u32 s{S_MWA}, s{S_MWA}, s{S_T1}")
    e(f"s_add_u32 s{S_MWA}, s{S_MWA}, 24576")
    e("s_waitcnt lgkmcnt(0)")
    srd(e, SX, P_X, 2048 * 1024)
    e(f"s_cmp_eq_u32 s{S_CW}, 0")
    e(f"s_cselect_b32 s{SBM}, s{P_BRE}, s{P_BIM}")
    e(f"s_cselect_b32 s{SBM + 1}, s{P_BRE + 1}, s{P_BIM + 1}")
    e(f"s_mov_b32 s{SBM + 2}, {512 * 1024:#x}")
    e(f"s_mov_b32 s{SBM + 3}, 0x00020000")
    srd(e, SWG, P_WG, 512 * 3584)
    srd(e, SWU, P_WU, 512 * 3584)
    e(f"s_cmp_lt_u32 s{S_RW}, 2")
    e(f"s_cselect_b32 s{SWA2}, s{P_WG}, s{P_WU}")
    e(f"s_cselect_b32 s{SWA2 + 1}, s{P_WG + 1}, s{P_WU + 1}")
    e(f"s_mov_b32 s{SWA2 + 2}, {512 * 3584:#x}")
    e(f"s_mov_b32 s{SWA2 + 3}, 0x00020000")

    def dma_list(C, cw):
        slot = (C % 4) * SLOT
        out = []

        def mk(mbase, moff, voff, srd_, soff):
            def f():
                e(f"s_add_u32 m0, s{mbase}, {slot + moff}")
                e(f"s_mov_b32 s{S_SO}, {soff}")
                e.vmem(f"buffer_load_dwordx4 v{voff}, {sr(srd_, 4)}, s{S_SO} offen lds", ("dma", C))
            return f
        if C < 8:
            out.append(mk(S_MX, 0, V_DX0, SX, 128 * C))
            out.append(mk(S_MX, 1024, V_DX1, SX, 128 * C))
            out.append(mk(S_MBM, 0, V_DBM, SBM, 128 * C))
            if cw == 0:
                out.append(mk(S_MWA, 0, V_DWA, SWG, 64 * 3584 * C))
                out.append(mk(S_MWA, 6272, V_DWA, SWU, 64 * 3584 * C))
            else:
                out.append(mk(S_MWA, 0, V_DWA, SWA2, 64 * 3584 * C))
        else:
            c = C - 8
            for m in range(2):
                out.append(mk(S_MX, 1024 * m, V_DWBG, SWG, (128 * c + 8 * m) * 3584))
                out.append(mk(S_MX, 16384 + 1024 * m, V_DWBU, SWU, (128 * c + 8 * m) * 3584))
        return out

    e(f"s_cmp_eq_u32 s{S_CW}, 0")
    e("s_cbranch_scc0 K1_ROLE1")
    pro_vm = list(e.vm)

    def common_addr():
        e(f"v_lshrrev_b32 v{T0}, 1, v{V_POS}")
        e(f"v_bfe_u32 v{T1}, v{V_I}, 1, 1")
        e(f"v_xor_b32 v{T0}, v{T0}, v{T1}")
        e(f"v_lshlrev_b32 v{T0}, 5, v{T0}")
        e(f"v_and_b32 v{T1}, 1, v{V_POS}")
        e(f"v_lshl_add_u32 v{T0}, v{T1}, 4, v{T0}")
        e(f"v_mul_u32_u24 v{T1}, 3584, v{V_I}")
        e(f"s_mul_i32 s{S_T0}, s{S_W}, {16 * 3584}")
        e(f"s_lshl_b32 s{S_T1}, s{S_CB}, 7")
        e(f"s_add_u32 s{S_T0}, s{S_T0}, s{S_T1}")
        e(f"v_add3_u32 v{V_DWBG}, v{T0}, v{T1}, s{S_T0}")
        e(f"v_xor_b32 v{V_DWBU}, 64, v{V_DWBG}")
        e(f"v_and_b32 v{T0}, 31, v{V_LANE}")
        e(f"v_lshrrev_b32 v{T1}, 5, v{V_LANE}")
        e(f"v_bfe_u32 v{T2}, v{V_LANE}, 1, 3")
        e(f"v_xor_b32 v{T2}, v{T2}, v{T1}")
        e(f"v_lshlrev_b32 v{T2}, 4, v{T2}")
        e(f"v_lshl_add_u32 v{T2}, v{T0}, 7, v{T2}")
        e(f"s_lshl_b32 s{S_T0}, s{S_RW}, 12")
        e(f"v_add_u32 v{V_XA}, s{S_T0}, v{T2}")
        for s in range(1, 4):
            e(f"v_xor_b32 v{V_XA + s}, {32 * s}, v{V_XA}")
        e(f"v_lshlrev_b32 v{V_ST}, 4, v{V_LANE}")
        e(f"v_bfe_u32 v{T0}, v{V_LANE}, 2, 2")
        e(f"v_lshl_add_u32 v{T0}, v{T1}, 3, v{T0}")
        e(f"v_bfe_u32 v{T1}, v{V_LANE}, 4, 1")
        e(f"v_and_b32 v{T3}, 3, v{V_LANE}")
        e(f"v_lshlrev_b32 v{T3}, 3, v{T3}")
        e(f"v_lshlrev_b32 v{V_WB}, 14, v{T1}")
        e(f"v_lshl_add_u32 v{V_WB}, v{T0}, 7, v{V_WB}")
        e(f"v_add_u32 v{V_WB}, v{V_WB}, v{T3}")
        e(f"v_bfe_u32 v{V_WB + 1}, v{V_LANE}, 3, 2")
        e(f"s_lshl_b32 s{S_T0}, s{S_CW}, 1")
        e(f"v_xor_b32 v{V_WB + 1}, s{S_T0}, v{V_WB + 1}")
        e(f"v_lshl_add_u32 v{V_WB}, v{V_WB + 1}, 5, v{V_WB}")
        e(f"v_xor_b32 v{V_WB + 1}, 32, v{V_WB}")
        srd(e, SWS, P_WS, WS_BYTES)
        e(f"s_mov_b32 s{S_NL2E}, {NLOG2E:#x}")
        e(f"s_lshl_b32 s{S_T0}, s{S_RB}, 1")
        e(f"s_lshr_b32 s{S_T1}, s{S_RW}, 1")
        e(f"s_add_u32 s{S_T0}, s{S_T0}, s{S_T1}")
        e(f"s_mul_i32 s{S_T0}, s{S_T0}, {KS * 2048}")
        e(f"s_and_b32 s{S_T1}, s{S_RW}, 1")
        e(f"s_lshl_b32 s{S_T1}, s{S_T1}, 10")
        e(f"s_add_u32 s{S_T0}, s{S_T0}, s{S_T1}")
        e(f"s_lshl_b32 s{S_T1}, s{S_CB}, 13")
        e(f"s_add_u32 s{S_A2S}, s{S_T0}, s{S_T1}")
        e(f"s_mul_i32 s{S_T1}, s{S_CB}, {7 * 2048}")
        e(f"s_add_u32 s{S_A2G}, s{S_T0}, s{S_T1}")
        e(f"s_add_u32 s{S_A2G}, s{S_A2G}, {64 * 2048}")

    def glu_epilogue(acc, jt):
        it = []
        for i in range(8):
            it.append(f"v_mul_f32 v{acc + i}, s{S_NL2E}, v{acc + i}")
        for i in range(8):
            it.append(f"v_exp_f32 v{acc + i}, v{acc + i}")
        for i in range(8):
            it.append(f"v_add_f32 v{acc + i}, 1.0, v{acc + i}")
        for i in range(8):
            it.append(f"v_rcp_f32 v{acc + i}, v{acc + i}")
        for i in range(8):
            it.append(f"v_mul_f32 v{acc + i}, v{acc + i}, v{acc + 8 + i}")
        for i in range(4):
            it.append(f"v_cvt_pk_bf16_f32 v{acc + 8 + i}, v{acc + 2 * i}, v{acc + 2 * i + 1}")
        it.append(f"s_add_u32 s{S_SO}, s{S_A2G}, {jt * 2048}")
        it.append(lambda: e.vmem(
            f"buffer_store_dwordx4 {vr(acc + 8, 4)}, v{V_ST}, {sr(SWS, 4)}, s{S_SO} offen {CFG['st_flag']}", "st"))
        a, b = it[-2], it[-1]
        it = it[:-2]
        it.append(lambda: (e(a), b()))
        return it

    steps = [("A", c, s) for c in range(8) for s in range(4)] + [("B", c, s) for c in range(4) for s in range(8)]

    def chunk_of(st):
        return st[1] if st[0] == "A" else 8 + st[1]

    def main_loop(cw, issue_reads, mfmas, hooks, nfillA, nfillB):
        e.wait_vm(("dma", 0))
        e("s_barrier")
        stamp(e, 1, f"s{S_W}", T0, T1, SWS)
        issue_reads(0)
        for n, st in enumerate(steps):
            nxt = steps[n + 1] if n + 1 < len(steps) else None
            if nxt is not None:
                C = chunk_of(nxt)
                if nxt[2] == 0:
                    if ("pre", C) in hooks:
                        hooks[("pre", C)]()
                    e.wait_lg_all()
                    e.wait_vm(("dma", C))
                    e("s_barrier")
                    if C + 3 <= 11:
                        e.fill_q[0:0] = dma_list(C + 3, cw)
                    if ("post", C) in hooks:
                        hooks[("post", C)]()
                issue_reads(n + 1)
            e.wait_lg(("rd", n))
            mfmas(n, nfillA if st[0] == "A" else nfillB)
            if ("step", n) in hooks:
                hooks[("step", n)]()

    def toggle(C, regsA, regsB):
        if C in (2, 6):
            for r_ in regsA:
                e(f"v_add_u32 v{r_}, {PAIR}, v{r_}")
        elif C == 4:
            for r_ in regsA:
                e(f"v_subrev_u32 v{r_}, {PAIR}, v{r_}")
        elif C == 10:
            for r_ in regsB:
                e(f"v_add_u32 v{r_}, {PAIR}, v{r_}")

    ACC_RE, ACC_IM, ACC_B0, ACC_B1 = 24, 40, 56, 72
    FR = 88
    LR, LI, L16R, L16I, L128R, L128I, LSR, LSI, CR2, CI2, CAR, CAI = range(104, 116)
    V_EA = 116
    V_SIDE = 21
    for C in range(4):
        for f in dma_list(C, 0):
            f()
    common_addr()
    stamp(e, 0, f"s{S_W}", 124, 125, SWS)
    e(f"s_lshl_b32 s{S_T0}, s{S_RW}, 12")
    e(f"s_sub_u32 s{S_T0}, 16384, s{S_T0}")
    for s in range(4):
        e(f"v_add_u32 v{V_BA + s}, s{S_T0}, v{V_XA + s}")
    SJ = ACC_B0
    R_PAR = SJ
    R_C = SJ + 4
    R_X0, R_X1, R_GW = SJ + 8, SJ + 12, SJ + 16
    R_WD = SJ + 20
    R_TA = SJ + 28
    srd(e, ST1, P_LRE, 1024)
    srd(e, ST2, P_LIM, 1024)
    srd(e, ST3, P_LDT, 1024)
    e(f"v_and_b32 v{R_TA}, 31, v{V_LANE}")
    e(f"s_lshl_b32 s{S_T0}, s{S_CB}, 6")
    e(f"v_lshl_add_u32 v{R_TA + 1}, v{R_TA}, 1, s{S_T0}")
    e.vmem(f"buffer_load_ushort v{R_PAR}, v{R_TA + 1}, {sr(ST1, 4)}, 0 offen", "sj")
    e.vmem(f"buffer_load_ushort v{R_PAR + 1}, v{R_TA + 1}, {sr(ST2, 4)}, 0 offen", "sj")
    e.vmem(f"buffer_load_ushort v{R_PAR + 2}, v{R_TA + 1}, {sr(ST3, 4)}, 0 offen", "sj")
    e(f"s_cmp_lt_u32 s{S_RW}, 2")
    e(f"s_cselect_b32 s{ST4}, s{P_CRE}, s{P_CIM}")
    e(f"s_cselect_b32 s{ST4 + 1}, s{P_CRE + 1}, s{P_CIM + 1}")
    e(f"s_mov_b32 s{ST4 + 2}, {512 * 1024:#x}")
    e(f"s_mov_b32 s{ST4 + 3}, 0x00020000")
    e(f"v_lshrrev_b32 v{R_TA + 2}, 5, v{V_LANE}")
    e(f"v_lshlrev_b32 v{R_TA + 1}, 10, v{R_TA}")
    e(f"v_lshl_add_u32 v{R_TA + 1}, v{R_TA + 2}, 4, v{R_TA + 1}")
    e(f"s_lshl_b32 s{S_T0}, s{S_RB}, 15")
    e(f"s_lshl_b32 s{S_T1}, s{S_CB}, 6")
    e(f"s_add_u32 s{S_T0}, s{S_T0}, s{S_T1}")
    e(f"s_and_b32 s{S_T1}, s{S_RW}, 1")
    e(f"s_lshl_b32 s{S_T1}, s{S_T1}, 5")
    e(f"s_add_u32 s{S_T0}, s{S_T0}, s{S_T1}")
    e.vmem(f"buffer_load_dwordx4 {vr(R_C, 4)}, v{R_TA + 1}, {sr(ST4, 4)}, s{S_T0} offen", "sj")
    e(f"s_lshl_b32 s{S_T0}, s{S_RB}, 7")
    e(f"s_lshl_b32 s{S_T1}, s{S_CB}, 3")
    e(f"s_add_u32 s{S_T0}, s{S_T0}, s{S_T1}")
    e(f"s_lshl_b32 s{S_T1}, s{S_RW}, 1")
    S_GROW = S_T3
    e(f"s_add_u32 s{S_GROW}, s{S_T0}, s{S_T1}")
    e(f"s_lshl_b32 s{S_T0}, s{S_GROW}, 10")
    e.vmem(f"buffer_load_dwordx4 {vr(R_X0, 4)}, v{V_ST}, {sr(SX, 4)}, s{S_T0} offen", "sj")
    e.vmem(f"buffer_load_dwordx4 {vr(R_X1, 4)}, v{V_ST}, {sr(SX, 4)}, s{S_T0} offen offset:1024", "sj")
    srd(e, ST1, P_GW, 1024)
    e.vmem(f"buffer_load_dwordx4 {vr(R_GW, 4)}, v{V_ST}, {sr(ST1, 4)}, 0 offen", "sj")
    srd(e, ST2, P_WD, 1792 * 1024)
    e(f"v_lshrrev_b32 v{R_TA + 1}, 2, v{V_LANE}")
    e(f"v_lshlrev_b32 v{R_TA + 1}, 10, v{R_TA + 1}")
    e(f"v_and_b32 v{R_TA + 3}, 3, v{V_LANE}")
    e(f"v_lshl_add_u32 v{R_TA + 1}, v{R_TA + 3}, 4, v{R_TA + 1}")
    S_JT1 = S_T4
    e(f"s_add_u32 s{S_JT1}, s{S_RW}, 4")
    e(f"s_min_u32 s{S_JT1}, s{S_JT1}, 6")
    for idx, sj in enumerate((S_RW, S_JT1)):
        e(f"s_mul_i32 s{S_T0}, s{S_CB}, 48")
        e(f"s_add_u32 s{S_T0}, s{S_T0}, 1024")
        e(f"s_lshl_b32 s{S_T1}, s{S_CB}, 6")
        e(f"s_sub_u32 s{S_T1}, s{S_T1}, 48")
        e(f"s_cmp_lt_u32 s{sj}, 3")
        e(f"s_cselect_b32 s{S_T0}, s{S_T0}, s{S_T1}")
        e(f"s_lshl_b32 s{S_T1}, s{sj}, 4")
        e(f"s_add_u32 s{S_T0}, s{S_T0}, s{S_T1}")
        e(f"s_lshl_b32 s{S_T0}, s{S_T0}, 10")
        e(f"s_lshl_b32 s{S_T1}, s{S_RB}, 6")
        e(f"s_add_u32 s{S_T0}, s{S_T0}, s{S_T1}")
        e(f"s_add_u32 m0, s{S_MX}, {WD_STAGE + idx * 1024}")
        e("s_nop 0")
        e.vmem(f"buffer_load_dwordx4 v{R_TA + 1}, {sr(ST2, 4)}, s{S_T0} offen lds", "sj")
    e(f"s_lshl_b32 s{S_T0}, s{S_RW}, 9")
    e(f"s_add_u32 s{S_T0}, s{S_T0}, {E_AREA}")
    e(f"v_lshlrev_b32 v{V_EA}, 8, v{R_TA + 2}")
    e(f"v_lshl_add_u32 v{V_EA}, v{R_TA}, 3, v{V_EA}")
    e(f"v_add_u32 v{V_EA}, s{S_T0}, v{V_EA}")
    e(f"v_mov_b32 v{V_SIDE + 1}, 0")
    e(f"v_mov_b32 v{V_SIDE + 2}, 0")
    e.ds(f"ds_write_b64 v{V_EA}, v[{V_SIDE + 1}:{V_SIDE + 2}]", "z")
    V_WDA = V_SIDE
    e(f"v_bfe_u32 v{V_WDA}, v{V_LANE}, 2, 2")
    e(f"v_lshl_add_u32 v{V_WDA}, v{R_TA + 2}, 2, v{V_WDA}")
    e(f"v_lshlrev_b32 v{V_WDA}, 6, v{V_WDA}")
    e(f"v_lshl_add_u32 v{V_WDA}, v{T1}, 5, v{V_WDA}")
    e(f"v_add3_u32 v{V_WDA}, v{V_WDA}, v{T3}, s{S_MX}")

    def cmul(dr, di, ar_, ai, br, bi, t):
        return [f"v_mul_f32 v{t}, v{ai}, v{bi}",
                f"v_mul_f32 v{t + 1}, v{ar_}, v{bi}",
                f"v_fma_f32 v{t}, v{ar_}, v{br}, -v{t}",
                f"v_fma_f32 v{di}, v{ai}, v{br}, v{t + 1}",
                f"v_mov_b32 v{dr}, v{t}"]

    def side_jobs():
        it = []
        it.append(lambda: e.wait_vm("sj"))
        def cstore():
            e(f"s_lshr_b32 s{S_T0}, s{S_RB}, 1")
            e(f"s_mul_i32 s{S_T0}, s{S_T0}, {KS * 2048}")
            e(f"s_and_b32 s{S_T1}, s{S_RB}, 1")
            e(f"s_lshl_b32 s{S_T1}, s{S_T1}, 10")
            e(f"s_add_u32 s{S_T2}, s{S_T0}, s{S_T1}")
            e(f"s_add_u32 s{S_T2}, s{S_T2}, {W2_OFF:#x}")
            e(f"s_lshl_b32 s{S_T0}, s{S_CB}, 2")
            e(f"s_add_u32 s{S_T0}, s{S_T0}, s{S_RW}")
            e(f"s_lshl_b32 s{S_T0}, s{S_T0}, 11")
            e(f"s_add_u32 s{S_T0}, s{S_T0}, s{S_T2}")
            e.vmem(f"buffer_store_dwordx4 {vr(R_C, 4)}, v{V_ST}, {sr(SWS, 4)}, s{S_T0} offen {CFG['st_flag']}", "st")
        it.append(cstore)
        for idx in range(2):
            for u in range(2):
                it.append(lambda idx=idx, u=u: e.ds(
                    f"ds_read_b64_tr_b16 {vr(R_WD + 4 * idx + 2 * u, 2)}, v{V_WDA} offset:{WD_STAGE - 131072 + idx * 1024 + u * 512}", "wd"))
        P0, P1, P2 = R_PAR, R_PAR + 1, R_PAR + 2
        tt = R_TA
        it += [f"v_lshlrev_b32 v{P0}, 16, v{P0}",
               f"v_lshlrev_b32 v{P1}, 16, v{P1}",
               f"v_lshlrev_b32 v{P2}, 16, v{P2}",
               f"v_mul_f32 v{P2}, {LOG2E:#x}, v{P2}",
               f"v_exp_f32 v{P2}, v{P2}",
               "s_nop 0",
               f"v_cvt_pk_bf16_f32 v{P2}, v{P2}, v{P2}",
               f"v_lshlrev_b32 v{P2}, 16, v{P2}",
               f"v_mul_f32 v{tt}, v{P2}, v{P0}",
               f"v_mul_f32 v{tt + 1}, v{P2}, v{P1}",
               f"v_mul_f32 v{tt}, {LOG2E:#x}, v{tt}",
               f"v_mul_f32 v{tt + 1}, 0.15915494, v{tt + 1}",
               f"v_exp_f32 v{tt}, v{tt}",
               f"v_rndne_f32 v{tt + 2}, v{tt + 1}",
               f"v_sub_f32 v{tt + 1}, v{tt + 1}, v{tt + 2}",
               f"v_cos_f32 v{LR}, v{tt + 1}",
               f"v_sin_f32 v{LI}, v{tt + 1}",
               f"v_mul_f32 v{tt + 2}, v{P0}, v{P0}",
               f"v_mul_f32 v{LR}, v{LR}, v{tt}",
               f"v_mul_f32 v{LI}, v{LI}, v{tt}",
               f"v_fmac_f32 v{tt + 2}, v{P1}, v{P1}",
               f"v_add_f32 v{tt}, -1.0, v{LR}",
               f"v_rcp_f32 v{tt + 2}, v{tt + 2}",
               f"v_mul_f32 v{CR2}, v{tt}, v{P0}",
               f"v_mul_f32 v{CI2}, v{LI}, v{P0}",
               f"v_fmac_f32 v{CR2}, v{LI}, v{P1}",
               f"v_fma_f32 v{CI2}, -v{tt}, v{P1}, v{CI2}",
               f"v_add_f32 v{tt + 2}, v{tt + 2}, v{tt + 2}",
               f"v_mul_f32 v{CR2}, v{CR2}, v{tt + 2}",
               f"v_mul_f32 v{CI2}, v{CI2}, v{tt + 2}"]
        it += cmul(L16R, L16I, LR, LI, LR, LI, tt)
        for _ in range(3):
            it += cmul(L16R, L16I, L16R, L16I, L16R, L16I, tt)
        it += [f"v_cmp_lt_u32 vcc, 31, v{V_LANE}",
               f"v_mov_b32 v{LSI}, 0",
               f"v_mov_b32 v{LSR}, 1.0",
               f"v_cndmask_b32 v{LSI}, v{LSI}, v{L16I}, vcc",
               f"v_cndmask_b32 v{LSR}, v{LSR}, v{L16R}, vcc"]
        it += cmul(L128R, L128I, L16R, L16I, L16R, L16I, tt)
        for bit in range(2):
            it += cmul(CAR, CAI, LSR, LSI, L128R, L128I, tt)
            it.append(lambda bit=bit: (e(f"s_bitcmp1_b32 s{S_RW}, {bit}"), e("s_cselect_b64 vcc, -1, 0")))
            it += ["s_nop 1",
                   f"v_cndmask_b32 v{LSR}, v{LSR}, v{CAR}, vcc",
                   f"v_cndmask_b32 v{LSI}, v{LSI}, v{CAI}, vcc"]
            it += cmul(L128R, L128I, L128R, L128I, L128R, L128I, tt)
        it.append(lambda: e.wait_lg("wd"))
        for idx, sj in enumerate((S_RW, S_JT1)):
            def wst(idx=idx, sj=sj):
                e(f"s_mul_i32 s{S_T0}, s{S_CB}, 7")
                e(f"s_add_u32 s{S_T0}, s{S_T0}, s{sj}")
                e(f"s_add_u32 s{S_T0}, s{S_T0}, 64")
                e(f"s_lshl_b32 s{S_T0}, s{S_T0}, 11")
                e(f"s_add_u32 s{S_T0}, s{S_T0}, s{S_T2}")
                e.vmem(f"buffer_store_dwordx4 {vr(R_WD + 4 * idx, 4)}, v{V_ST}, {sr(SWS, 4)}, s{S_T0} offen {CFG['st_flag']}", "st")
            it.append(wst)
        g0, g1 = R_PAR, R_PAR + 1
        wl, wh, a0, a1 = R_C, R_C + 1, R_C + 2, R_C + 3
        it += [f"v_mov_b32 v{g0}, 0", f"v_mov_b32 v{g1}, 0"]
        for d in range(4):
            it += [f"v_lshlrev_b32 v{wl}, 16, v{R_GW + d}",
                   f"v_and_b32 v{wh}, 0xffff0000, v{R_GW + d}"]
            for rx, g in ((R_X0, g0), (R_X1, g1)):
                it += [f"v_lshlrev_b32 v{a0}, 16, v{rx + d}",
                       f"v_and_b32 v{a1}, 0xffff0000, v{rx + d}",
                       f"v_mul_f32 v{a0}, v{a0}, v{wl}",
                       f"v_mul_f32 v{a1}, v{a1}, v{wh}",
                       f"v_cvt_pk_bf16_f32 v{a0}, v{a0}, v{a1}",
                       f"v_and_b32 v{a1}, 0xffff0000, v{a0}",
                       f"v_lshlrev_b32 v{a0}, 16, v{a0}",
                       f"v_add_f32 v{g}, v{g}, v{a1}",
                       f"v_add_f32 v{g}, v{g}, v{a0}"]
        for d in ("row_shr:1 row_mask:0xf bank_mask:0xf", "row_shr:2 row_mask:0xf bank_mask:0xf",
                  "row_shr:4 row_mask:0xf bank_mask:0xf", "row_shr:8 row_mask:0xf bank_mask:0xf",
                  "row_bcast:15 row_mask:0xa bank_mask:0xf", "row_bcast:31 row_mask:0xc bank_mask:0xf"):
            it += ["s_nop 1",
                   f"v_add_f32_dpp v{g0}, v{g0}, v{g0} {d}",
                   f"v_add_f32_dpp v{g1}, v{g1}, v{g1} {d}"]

        def gfin():
            e("s_nop 1")
            e(f"v_readlane_b32 s{S_T0}, v{g0}, 63")
            e(f"v_readlane_b32 s{S_T1}, v{g1}, 63")
            e("s_nop 1")
            e(f"v_mov_b32 v{a0}, s{S_T0}")
            e(f"v_writelane_b32 v{a0}, s{S_T1}, 1")
        it.append(gfin)
        it += ["s_nop 0",
               f"v_cvt_pk_bf16_f32 v{a0}, v{a0}, v{a0}",
               f"v_lshlrev_b32 v{a0}, 16, v{a0}",
               f"v_mul_f32 v{a0}, s{S_NL2E}, v{a0}",
               f"v_exp_f32 v{a0}, v{a0}",
               f"v_lshlrev_b32 v{wl}, 3, v{V_LANE}",
               f"v_add_f32 v{a0}, 1.0, v{a0}",
               f"v_cmp_gt_u32 vcc, 2, v{V_LANE}",
               f"v_rcp_f32 v{a0}, v{a0}",
               f"v_mov_b32 v{wh}, 0x7ffffff0",
               f"v_cvt_pk_bf16_f32 v{a0}, v{a0}, v{a0}",
               f"v_cndmask_b32 v{wl}, v{wh}, v{wl}, vcc",
               f"v_lshlrev_b32 v{a0}, 16, v{a0}",
               f"v_sub_f32 v{a1}, 1.0, v{a0}",
               f"v_cvt_pk_bf16_f32 v{a1}, v{a1}, v{a1}",
               f"v_lshlrev_b32 v{a1}, 16, v{a1}"]

        def gst():
            e(f"s_lshl_b32 s{S_T0}, s{S_GROW}, 3")
            e(f"s_add_u32 s{S_T0}, s{S_T0}, {G_OFF:#x}")
            e.vmem(f"buffer_store_dwordx2 {vr(a0, 2)}, v{wl}, {sr(SWS, 4)}, s{S_T0} offen {CFG['st_flag']}", "st")
        it.append(gst)
        return it

    e(f"v_add_u32 v{V_WDA}, 131072, v{V_WDA}")

    def reads0(n):
        st = steps[n]
        C = chunk_of(st)
        if st[2] == 0:
            toggle(C, [V_XA + i for i in range(4)] + [V_BA + i for i in range(4)], [V_WB, V_WB + 1])
        lo = (C % 2) * SLOT
        fb = FR + 8 * (n % 2)
        if st[0] == "A":
            s = st[2]
            e.ds(f"ds_read_b128 {ar(4 * n, 4)}, v{V_XA + s} offset:{lo}", ("rd", n))
            e.ds(f"ds_read_b128 {vr(fb, 4)}, v{V_BA + s} offset:{lo}", ("rd", n))
            e.ds(f"ds_read_b128 {vr(fb + 4, 4)}, v{V_BA + s} offset:{lo + 4096}", ("rd", n))
        else:
            s = st[2]
            for j in range(2):
                for u in range(2):
                    e.ds(f"ds_read_b64_tr_b16 {vr(fb + 4 * j + 2 * u, 2)}, v{V_WB + j} offset:{lo + (16 * s + 4 * u) * 128}", ("rd", n))

    def mf(acc, a, b, first):
        c = "0" if first else vr(acc, 16)
        e(f"v_mfma_f32_32x32x16_bf16 {vr(acc, 16)}, {a}, {b}, {c}")

    def mfmas0(n, nf):
        st = steps[n]
        fb = FR + 8 * (n % 2)
        if st[0] == "A":
            for j, acc in enumerate((ACC_RE, ACC_IM)):
                mf(acc, ar(4 * n, 4), vr(fb + 4 * j, 4), n == 0)
                e.fill(nf)
        else:
            k = n - 32
            for j, acc in enumerate((ACC_B0, ACC_B1)):
                mf(acc, vr(fb + 4 * j, 4), ar(4 * k, 4), k == 0)
                e.fill(nf)

    ER, EI, TT = 117, 118, 119
    ER, EI = 118, 119
    TQ = 117

    def ssm_p1():
        it = []
        it += [f"v_mov_b32 v{ER}, v{ACC_RE}", f"v_mov_b32 v{EI}, v{ACC_IM}"]
        for i in range(1, 16):
            it += [f"v_fma_f32 v{TQ}, v{LR}, v{ER}, v{ACC_RE + i}",
                   f"v_fma_f32 v{T0}, v{LR}, v{EI}, v{ACC_IM + i}",
                   f"v_fma_f32 v{TQ}, -v{LI}, v{EI}, v{TQ}",
                   f"v_fma_f32 v{EI}, v{LI}, v{ER}, v{T0}",
                   f"v_mov_b32 v{ER}, v{TQ}"]
        it.append(lambda: e.ds(f"ds_write_b64 v{V_EA}, {vr(ER, 2)} offset:2048", "e"))
        return it

    EB = 2
    def ssm_p2():
        it = []
        regs = [2, 4, 6, 8, 10, 12, 18]
        for j in range(6, -1, -1):
            it.append(lambda j=j: e.ds(f"ds_read_b64 {vr(regs[j], 2)}, v{V_EA} offset:{2048 - 256 * (j + 1)}", "pe"))
        it.append(lambda: e.wait_lg("pe"))
        it += [f"v_mov_b32 v{CAR}, v{regs[6]}", f"v_mov_b32 v{CAI}, v{regs[6] + 1}"]
        for j in range(5, -1, -1):
            it += [f"v_fma_f32 v{TQ}, v{L16R}, v{CAR}, v{regs[j]}",
                   f"v_fma_f32 v{T0}, v{L16R}, v{CAI}, v{regs[j] + 1}",
                   f"v_fma_f32 v{TQ}, -v{L16I}, v{CAI}, v{TQ}",
                   f"v_fma_f32 v{CAI}, v{L16I}, v{CAR}, v{T0}",
                   f"v_mov_b32 v{CAR}, v{TQ}"]
        it += [f"v_fma_f32 v{ER}, v{L16R}, v{CAR}, v{ER}",
               f"v_fma_f32 v{EI}, v{L16R}, v{CAI}, v{EI}",
               f"v_fma_f32 v{ER}, -v{L16I}, v{CAI}, v{ER}",
               f"v_fma_f32 v{EI}, v{L16I}, v{CAR}, v{EI}"]

        def publish():
            e(f"s_lshl_b32 s{S_T0}, s{S_CB}, 12")
            e(f"s_add_u32 s{S_T0}, s{S_T0}, {T_OFF:#x}")
            e(f"s_add_u32 s{ST}, s{P_WS}, s{S_T0}")
            e(f"s_addc_u32 s{ST + 1}, s{P_WS + 1}, 0")
            e(f"s_mov_b32 s{ST + 2}, 4096")
            e(f"s_mov_b32 s{ST + 3}, 0x00020000")
            srd(e, SDBG, P_DBG, 256)
            e(f"s_cmp_eq_u32 s{S_RW}, 3")
            e("s_cbranch_scc0 K1_NOPUB")
            e(f"s_cmp_eq_u32 s{S_RB}, 15")
            e("s_cbranch_scc1 K1_NOPUB")
            e(f"v_lshlrev_b32 v{T0}, 3, v{V_LANE}")
            e(f"s_lshl_b32 s{S_T0}, s{S_RB}, 8")
            e(f"s_sub_u32 s{S_T0}, s{S_T0}, 256")
            e(f"v_add_u32 v{T0}, s{S_T0}, v{T0}")
            e(f"v_cmp_lt_u32 vcc, 31, v{V_LANE}")
            e(f"v_mov_b32 v{T1}, 0x7ffffff0")
            e("s_nop 0")
            e(f"v_cndmask_b32 v{T0}, v{T1}, v{T0}, vcc")
            e(f"buffer_store_dwordx2 {vr(ER, 2)}, v{T0}, {sr(ST, 4)}, 0 offen sc1")
            e(f"s_lshl_b32 s{S_T0}, 1, s{S_RB}")
            e(f"v_mov_b32 v{T2}, s{S_T0}")
            e(f"s_lshl_b32 s{S_T0}, s{S_CB}, 2")
            e(f"v_mov_b32 v{T0}, s{S_T0}")
            e("s_waitcnt vmcnt(0)")
            e("s_mov_b64 exec, 1")
            e(f"buffer_atomic_or v{T2}, v{T0}, {sr(SDBG, 4)}, 0 offen")
            e("s_mov_b64 exec, -1")
            e.label("K1_NOPUB")
        it.append(publish)
        return it

    def ssm_p3():
        GB = FR
        e(f"v_mov_b32 v{T2}, 0")
        e(f"v_mov_b32 v{ER}, 0")
        e(f"v_mov_b32 v{EI}, 0")
        e(f"s_cmp_eq_u32 s{S_RB}, 0")
        e("s_cbranch_scc1 K1_NOG")
        e(f"s_lshl_b32 s{S_T1}, 1, s{S_RB}")
        e(f"s_sub_u32 s{S_T1}, s{S_T1}, 1")
        e(f"s_lshl_b32 s{S_T2}, s{S_CB}, 2")
        e(f"s_mov_b32 s{S_SO}, 0x40000")
        e.label("K1_POLL")
        e(f"buffer_load_dword v{T0}, v{T2}, {sr(SDBG, 4)}, s{S_T2} offen sc1")
        e("s_waitcnt vmcnt(0)")
        e(f"v_readfirstlane_b32 s{S_T0}, v{T0}")
        e(f"s_and_b32 s{S_T0}, s{S_T0}, s{S_T1}")
        e(f"s_cmp_eq_u32 s{S_T0}, s{S_T1}")
        e("s_cbranch_scc1 K1_POLLED")
        e("s_sleep 2")
        e(f"s_sub_u32 s{S_SO}, s{S_SO}, 1")
        e(f"s_cmp_lg_u32 s{S_SO}, 0")
        e("s_cbranch_scc1 K1_POLL")
        e.label("K1_POLLED")
        tregs = [2, 4, 6, 8, 10, 12, 18, 20] + [FR + 2 * i for i in range(7)]
        e(f"v_and_b32 v{T0}, 31, v{V_LANE}")
        e(f"v_lshlrev_b32 v{T0}, 3, v{T0}")
        e(f"s_lshl_b32 s{S_T0}, s{S_RB}, 8")
        e(f"s_sub_u32 s{S_T0}, s{S_T0}, {15 * 256}")
        e(f"v_add_u32 v{T0}, s{S_T0}, v{T0}")
        for j in range(14, -1, -1):
            e(f"buffer_load_dwordx2 {vr(tregs[j], 2)}, v{T0}, {sr(ST, 4)}, 0 offen sc1")
            if j:
                e(f"v_add_u32 v{T0}, 256, v{T0}")
        for j in range(14, -1, -1):
            e(f"s_waitcnt vmcnt({j})")
            e(f"v_fma_f32 v{TQ}, v{L128R}, v{ER}, v{tregs[j]}")
            e(f"v_fma_f32 v{T0}, v{L128R}, v{EI}, v{tregs[j] + 1}")
            e(f"v_fma_f32 v{TQ}, -v{L128I}, v{EI}, v{TQ}")
            e(f"v_fma_f32 v{EI}, v{L128I}, v{ER}, v{T0}")
            e(f"v_mov_b32 v{ER}, v{TQ}")
        e.label("K1_NOG")
        e.vm = []
        e(f"v_fma_f32 v{CAR}, v{LSR}, v{ER}, v{CAR}")
        e(f"v_fma_f32 v{CAI}, v{LSR}, v{EI}, v{CAI}")
        e(f"v_fma_f32 v{CAR}, -v{LSI}, v{EI}, v{CAR}")
        e(f"v_fma_f32 v{CAI}, v{LSI}, v{ER}, v{CAI}")
        hr, hi = CAR, CAI
        for i in range(16):
            e(f"v_fma_f32 v{ACC_RE + i}, v{LR}, v{hr}, v{ACC_RE + i}")
            e(f"v_fma_f32 v{ACC_IM + i}, v{LR}, v{hi}, v{ACC_IM + i}")
            e(f"v_fma_f32 v{ACC_RE + i}, -v{LI}, v{hi}, v{ACC_RE + i}")
            e(f"v_fma_f32 v{ACC_IM + i}, v{LI}, v{hr}, v{ACC_IM + i}")
            if i:
                k = i - 1
                e(f"v_mul_f32 v{TQ}, v{CI2}, v{ACC_IM + k}")
                e(f"v_mul_f32 v{T0}, v{CI2}, v{ACC_RE + k}")
                e(f"v_fma_f32 v{ACC_RE + k}, v{CR2}, v{ACC_RE + k}, -v{TQ}")
                e(f"v_fma_f32 v{ACC_IM + k}, -v{CR2}, v{ACC_IM + k}, -v{T0}")
            hr, hi = ACC_RE + i, ACC_IM + i
        k = 15
        e(f"v_mul_f32 v{TQ}, v{CI2}, v{ACC_IM + k}")
        e(f"v_mul_f32 v{T0}, v{CI2}, v{ACC_RE + k}")
        e(f"v_fma_f32 v{ACC_RE + k}, v{CR2}, v{ACC_RE + k}, -v{TQ}")
        e(f"v_fma_f32 v{ACC_IM + k}, -v{CR2}, v{ACC_IM + k}, -v{T0}")
        for base in (ACC_RE, ACC_IM):
            for i in range(8):
                e(f"v_cvt_pk_bf16_f32 v{base + i}, v{base + 2 * i}, v{base + 2 * i + 1}")
        e(f"s_mul_i32 s{S_T0}, s{S_RW}, {SLOT}")
        e(f"s_add_u32 s{S_T0}, s{S_T0}, 32768")
        e(f"v_and_b32 v{T0}, 31, v{V_LANE}")
        e(f"v_lshlrev_b32 v{T0}, 6, v{T0}")
        e(f"v_lshrrev_b32 v{T1}, 5, v{V_LANE}")
        e(f"v_lshl_add_u32 v{T0}, v{T1}, 5, v{T0}")
        e(f"v_add_u32 v{T0}, s{S_T0}, v{T0}")
        e(f"ds_write_b128 v{T0}, {vr(ACC_RE, 4)}")
        e(f"ds_write_b128 v{T0}, {vr(ACC_RE + 4, 4)} offset:16")
        e(f"ds_write_b128 v{T0}, {vr(ACC_IM, 4)} offset:2048")
        e(f"ds_write_b128 v{T0}, {vr(ACC_IM + 4, 4)} offset:2064")
        e(f"v_bfe_u32 v{T2}, v{V_LANE}, 2, 2")
        e(f"v_lshl_add_u32 v{T2}, v{T1}, 3, v{T2}")
        e(f"v_lshlrev_b32 v{T2}, 6, v{T2}")
        e(f"v_and_b32 v{T3}, 1, v{V_LANE}")
        e(f"v_lshl_add_u32 v{T2}, v{T3}, 5, v{T2}")
        e(f"v_bfe_u32 v{T3}, v{V_LANE}, 1, 1")
        e(f"v_lshl_add_u32 v{T2}, v{T3}, 3, v{T2}")
        e(f"v_bfe_u32 v{T3}, v{V_LANE}, 4, 1")
        e(f"v_lshl_add_u32 v{T2}, v{T3}, 4, v{T2}")
        e(f"v_add_u32 v{T2}, s{S_T0}, v{T2}")
        e("s_waitcnt lgkmcnt(0)")
        for q in range(4):
            for u in range(2):
                e(f"ds_read_b64_tr_b16 {vr(FR + 4 * q + 2 * u, 2)}, v{T2} offset:{(q >> 1) * 2048 + (q & 1) * 1024 + u * 256}")
        for q in range(4):
            e(f"s_add_u32 s{S_SO}, s{S_A2S}, {q * 2048}")
            e(f"s_waitcnt lgkmcnt({6 - 2 * q})")
            e(f"buffer_store_dwordx4 {vr(FR + 4 * q, 4)}, v{V_ST}, {sr(SWS, 4)}, s{S_SO} offen {CFG['st_flag']}")

    hooks0 = {
        ("post", 4): lambda: e.q(*side_jobs()),
        ("pre", 8): lambda: e.flush(),
        ("step", 33): lambda: e.q(*ssm_p1()),
        ("pre", 9): lambda: e.flush(),
        ("post", 9): lambda: e.q(*ssm_p2()),
        ("pre", 11): lambda: e.flush(),
    }
    main_loop(0, reads0, mfmas0, hooks0, CFG["fillA0"], CFG["fillB0"])
    e.flush()
    stamp(e, 2, f"s{S_W}", T0, T1, SWS)
    e("s_nop 7")
    e("s_nop 3")
    for it in (glu_epilogue(ACC_B0, 3), glu_epilogue(ACC_B1, 4)):
        e.q(*it)
    e.flush()
    stamp(e, 3, f"s{S_W}", T0, T1, SWS)
    ssm_p3()
    stamp(e, 4, f"s{S_W}", T0, T1, SWS)
    e("s_endpgm")

    e.label("K1_ROLE1")
    e.vm = list(pro_vm)
    e.lg = []
    ACC_A = [24, 40, 56]
    ACC_B = [72, 88]
    FR1 = 104
    for C in range(4):
        for f in dma_list(C, 1):
            f()
    common_addr()
    stamp(e, 0, f"s{S_W}", 124, 125, SWS)
    e(f"v_mul_u32_u24 v{V_WA}, 6272, v{T1}")
    e(f"v_mul_u32_u24 v{T0}, 96, v{T0}")
    e(f"v_add3_u32 v{V_WA}, v{V_WA}, v{T0}, v{T3}")
    e(f"v_add_u32 v{V_WA}, 24576, v{V_WA}")

    def reads1(n):
        st = steps[n]
        C = chunk_of(st)
        if st[2] == 0:
            toggle(C, [V_XA + i for i in range(4)] + [V_WA], [V_WB, V_WB + 1])
        lo = (C % 2) * SLOT
        fb = FR1 + 12 * (n % 2)
        s = st[2]
        if st[0] == "A":
            e.ds(f"ds_read_b128 {ar(4 * n, 4)}, v{V_XA + s} offset:{lo}", ("rd", n))
            for j in range(3):
                for u in range(2):
                    e.ds(f"ds_read_b64_tr_b16 {vr(fb + 4 * j + 2 * u, 2)}, v{V_WA} offset:{lo + (16 * s + 4 * u) * 96 + 32 * j}", ("rd", n))
        else:
            for j in range(2):
                for u in range(2):
                    e.ds(f"ds_read_b64_tr_b16 {vr(fb + 4 * j + 2 * u, 2)}, v{V_WB + j} offset:{lo + (16 * s + 4 * u) * 128}", ("rd", n))

    def mfmas1(n, nf):
        st = steps[n]
        fb = FR1 + 12 * (n % 2)
        if st[0] == "A":
            for j, acc in enumerate(ACC_A):
                mf(acc, vr(fb + 4 * j, 4), ar(4 * n, 4), n == 0)
                e.fill(nf)
        else:
            k = n - 32
            for j, acc in enumerate(ACC_B):
                mf(acc, vr(fb + 4 * j, 4), ar(4 * k, 4), k == 0)
                e.fill(nf)

    T0s, T1s = 18, 19
    hooks1 = {
        ("step", 33): lambda: [e.q(*glu_epilogue(ACC_A[j], j)) for j in range(3)],
    }
    saveT = (T0, T1)
    main_loop1_T = None

    def main_loop_r1():
        e.wait_vm(("dma", 0))
        e("s_barrier")
        stamp(e, 1, f"s{S_W}", T0s, T1s, SWS)
        reads1(0)
        for n, st in enumerate(steps):
            nxt = steps[n + 1] if n + 1 < len(steps) else None
            if nxt is not None:
                C = chunk_of(nxt)
                if nxt[2] == 0:
                    e.wait_lg_all()
                    e.wait_vm(("dma", C))
                    e("s_barrier")
                    if C + 3 <= 11:
                        e.fill_q[0:0] = dma_list(C + 3, 1)
                reads1(n + 1)
            e.wait_lg(("rd", n))
            mfmas1(n, CFG["fillA1"] if st[0] == "A" else CFG["fillB1"])
            if ("step", n) in hooks1:
                hooks1[("step", n)]()
    main_loop_r1()
    e.flush()
    stamp(e, 2, f"s{S_W}", T0s, T1s, SWS)
    e("s_nop 7")
    e("s_nop 3")
    for j in range(2):
        e.q(*glu_epilogue(ACC_B[j], 5 + j))
    e.flush()
    stamp(e, 3, f"s{S_W}", T0s, T1s, SWS)
    e.label("K1_END")
    e("s_endpgm")
    return e.text()


K2_LDS = 5 * 16384


def gen_k2():
    e = Asm()
    R = CFG["ring"]
    NS = 44
    e.raw(".globl k2_kernel\n.p2align 8\n.type k2_kernel,@function\nk2_kernel:")
    e("s_cmp_ge_u32 s2, 256")
    e("s_cbranch_scc1 K2_END")
    e("s_load_dwordx2 s[8:9], s[0:1], 0")
    e("s_load_dwordx2 s[10:11], s[0:1], 64")
    e("s_load_dwordx2 s[12:13], s[0:1], 112")
    e("s_load_dwordx2 s[14:15], s[0:1], 128")
    S_MP, S_NP, S_WV = 5, 6, 7
    SA, SW, SG, SXX, SD, SO = 16, 20, 24, 28, 32, 36
    V_LANE, V_OFF, V_LW = 1, 2, 3
    ACC = 64
    e("v_lshrrev_b32 v4, 6, v0")
    e(f"v_and_b32 v{V_LANE}, 63, v0")
    e("s_and_b32 s3, s2, 7")
    e(f"v_readfirstlane_b32 s{S_WV}, v4")
    e("s_lshr_b32 s4, s2, 3")
    e(f"s_lshr_b32 s{S_MP}, s3, 1")
    e(f"s_lshl_b32 s{S_MP}, s{S_MP}, 3")
    e("s_lshr_b32 s40, s4, 2")
    e(f"s_add_u32 s{S_MP}, s{S_MP}, s40")
    e(f"s_and_b32 s{S_NP}, s3, 1")
    e(f"s_lshl_b32 s{S_NP}, s{S_NP}, 2")
    e("s_and_b32 s40, s4, 3")
    e(f"s_add_u32 s{S_NP}, s{S_NP}, s40")
    e(f"v_lshlrev_b32 v{V_OFF}, 4, v{V_LANE}")
    e(f"s_mul_i32 s40, s{S_MP}, {KS * 2048}")
    e(f"s_mul_i32 s41, s{S_WV}, {NS * 2048}")
    e("s_add_u32 s40, s40, s41")
    e(f"s_mul_i32 s42, s{S_NP}, {KS * 2048}")
    e("s_add_u32 s42, s42, s41")
    e(f"s_add_u32 s42, s42, {W2_OFF:#x}")
    e("s_waitcnt lgkmcnt(0)")
    e(f"s_add_u32 s{SA}, s14, s40")
    e(f"s_addc_u32 s{SA + 1}, s15, 0")
    e(f"s_mov_b32 s{SA + 2}, {NS * 2048:#x}")
    e(f"s_mov_b32 s{SA + 3}, 0x00020000")
    e(f"s_add_u32 s{SW}, s14, s42")
    e(f"s_addc_u32 s{SW + 1}, s15, 0")
    e(f"s_mov_b32 s{SW + 2}, {NS * 2048:#x}")
    e(f"s_mov_b32 s{SW + 3}, 0x00020000")

    def loads(i):
        b = 16 * (i % R)
        if i % 2 == 0:
            e(f"s_mov_b32 s43, {i * 2048}")
        o = (i % 2) * 2048
        e.vmem(f"buffer_load_dwordx4 {ar(b, 4)}, v{V_OFF}, {sr(SA, 4)}, s43 offen offset:{o}", ("l", i))
        e.vmem(f"buffer_load_dwordx4 {ar(b + 8, 4)}, v{V_OFF}, {sr(SW, 4)}, s43 offen offset:{o}", ("l", i))
        e.vmem(f"buffer_load_dwordx4 {ar(b + 4, 4)}, v{V_OFF}, {sr(SA, 4)}, s43 offen offset:{o + 1024}", ("l", i))
        e.vmem(f"buffer_load_dwordx4 {ar(b + 12, 4)}, v{V_OFF}, {sr(SW, 4)}, s43 offen offset:{o + 1024}", ("l", i))

    for i in range(R):
        loads(i)
    srd(e, SG, 14, WS_BYTES)
    srd(e, SXX, 8, 2048 * 1024)
    srd(e, SD, 10, 1024)
    srd(e, SO, 12, 2048 * 2048)
    V_T, V_GO, V_XO, V_DO, V_OO = 5, 6, 7, 8, 9
    V_G = 10
    V_X = 12
    V_D = 20
    TA, TB = 28, 29
    e(f"v_bfe_u32 v{TA}, v{V_LANE}, 2, 1")
    e(f"v_lshlrev_b32 v{V_T}, 4, v{TA}")
    e(f"v_bfe_u32 v{TA}, v{V_LANE}, 3, 2")
    e(f"v_lshl_add_u32 v{V_T}, v{TA}, 2, v{V_T}")
    e(f"v_and_b32 v{TA}, 3, v{V_LANE}")
    e(f"v_add_u32 v{V_T}, v{V_T}, v{TA}")
    e(f"s_lshl_b32 s40, s{S_MP}, 6")
    e(f"s_lshr_b32 s41, s{S_WV}, 1")
    e("s_lshl_b32 s41, s41, 5")
    e("s_add_u32 s40, s40, s41")
    e(f"v_add_u32 v{V_T}, s40, v{V_T}")
    e(f"s_lshl_b32 s40, s{S_NP}, 6")
    e(f"s_and_b32 s41, s{S_WV}, 1")
    e("s_lshl_b32 s41, s41, 5")
    e("s_add_u32 s40, s40, s41")
    e(f"v_lshrrev_b32 v{TA}, 5, v{V_LANE}")
    e(f"v_lshlrev_b32 v{TA}, 2, v{TA}")
    e(f"v_add_u32 v{TA}, s40, v{TA}")
    e(f"v_lshlrev_b32 v{V_GO}, 3, v{V_T}")
    e(f"v_lshlrev_b32 v{V_DO}, 1, v{TA}")
    e(f"v_lshl_add_u32 v{V_XO}, v{V_T}, 10, v{V_DO}")
    e(f"v_lshlrev_b32 v{V_OO}, 1, v{V_XO}")
    e(f"s_mov_b32 s44, {G_OFF:#x}")
    e(f"s_add_u32 s40, s{S_WV}, 1")
    e(f"s_cmp_eq_u32 s{S_WV}, 0")
    e("s_cselect_b32 s40, 0, s40")
    e("s_lshl_b32 s40, s40, 14")
    e(f"v_add_u32 v{V_LW}, s40, v{V_OFF}")
    V_LR = 4
    e(f"s_lshl_b32 s40, s{S_WV}, 12")
    e(f"v_add_u32 v{V_LR}, s40, v{V_OFF}")

    def ep_loads():
        e.vmem(f"buffer_load_dwordx2 {vr(V_G, 2)}, v{V_GO}, {sr(SG, 4)}, s44 offen", "ep")
        for a in range(4):
            e.vmem(f"buffer_load_dwordx2 {vr(V_X + 2 * a, 2)}, v{V_XO}, {sr(SXX, 4)}, 0 offen offset:{16 * a}", "ep")
            e.vmem(f"buffer_load_dwordx2 {vr(V_D + 2 * a, 2)}, v{V_DO}, {sr(SD, 4)}, 0 offen offset:{16 * a}", "ep")

    XD = 32
    def ep_pre():
        it = [lambda: e.wait_vm("ep")]
        for d in range(8):
            o = XD + 2 * d
            it += [f"v_lshlrev_b32 v{o}, 16, v{V_X + d}",
                   f"v_and_b32 v{o + 1}, 0xffff0000, v{V_X + d}",
                   f"v_lshlrev_b32 v{TA}, 16, v{V_D + d}",
                   f"v_and_b32 v{TB}, 0xffff0000, v{V_D + d}",
                   f"v_mul_f32 v{o}, v{o}, v{TA}",
                   f"v_mul_f32 v{o + 1}, v{o + 1}, v{TB}",
                   f"v_cvt_pk_bf16_f32 v{o}, v{o}, v{o + 1}",
                   f"v_and_b32 v{o + 1}, 0xffff0000, v{o}",
                   f"v_lshlrev_b32 v{o}, 16, v{o}"]
        return it

    def write_partial(addr, off0):
        for qd in range(4):
            for g4 in range(4):
                e.ds(f"ds_write_b128 v{addr}, {vr(ACC + 16 * qd + 4 * g4, 4)} offset:{off0 + qd * 4096 + g4 * 1024}", "pw")

    for i in range(NS):
        b = 16 * (i % R)
        e.wait_vm(("l", i))
        for tt in range(2):
            for nt in range(2):
                acc = ACC + 16 * (2 * tt + nt)
                c = "0" if i == 0 else vr(acc, 16)
                e(f"v_mfma_f32_32x32x16_bf16 {vr(acc, 16)}, {ar(b + 8 + 4 * nt, 4)}, {ar(b + 4 * tt, 4)}, {c}")
                e.fill(3)
        if i + R < NS:
            loads(i + R)
        if i + R == NS:
            ep_loads()
        if i == NS - 6:
            e.q(*ep_pre())
        if i == 19:
            e(f"s_cmp_eq_u32 s{S_WV}, 1")
            e("s_cbranch_scc0 K2_NOFLUSH")
            e("s_nop 7")
            e("s_nop 3")
            write_partial(V_OFF, 16384)
            e("s_waitcnt lgkmcnt(0)")
            e.lg = []
            for r_ in range(64):
                e(f"v_mov_b32 v{ACC + r_}, 0")
            e("s_nop 0")
            e.label("K2_NOFLUSH")
    e.flush()
    e("s_nop 7")
    e("s_nop 3")
    write_partial(V_LW, 0)
    e.wait_lg_all()
    e("s_barrier")
    PR = [ACC, ACC + 16, ACC + 32, ACC + 48, 48]
    for g4 in range(4):
        for s in range(5):
            if s * 16384 + g4 * 1024 > 65535:
                continue
            e.ds(f"ds_read_b128 {vr(PR[s] + 4 * g4, 4)}, v{V_LR} offset:{s * 16384 + g4 * 1024}", ("pr", g4))
        if g4 == 0:
            e(f"v_add_u32 v{TA}, 65536, v{V_LR}")
        e.ds(f"ds_read_b128 {vr(PR[4] + 4 * g4, 4)}, v{TA} offset:{g4 * 1024}", ("pr", g4))
        if g4 == 1:
            pass
    for g4 in range(4):
        if g4 == 0:
            pass
        n_after = 5 * (3 - g4)
        e(f"s_waitcnt lgkmcnt({min(n_after, 15)})")
        for b in range(4):
            i = 4 * g4 + b
            e(f"v_add_f32 v{PR[0] + i}, v{PR[0] + i}, v{PR[1] + i}")
            e(f"v_add_f32 v{PR[2] + i}, v{PR[2] + i}, v{PR[3] + i}")
        for b in range(4):
            i = 4 * g4 + b
            e(f"v_add_f32 v{PR[0] + i}, v{PR[0] + i}, v{XD + i}")
            e(f"v_add_f32 v{PR[2] + i}, v{PR[2] + i}, v{PR[4] + i}")
        for b in range(4):
            i = 4 * g4 + b
            e(f"v_mul_f32 v{PR[0] + i}, v{PR[0] + i}, v{V_G}")
        for b in range(4):
            i = 4 * g4 + b
            e(f"v_fmac_f32 v{PR[0] + i}, v{PR[2] + i}, v{V_G + 1}")
        e(f"buffer_store_dwordx4 {vr(PR[0] + 4 * g4, 4)}, v{V_OO}, {sr(SO, 4)}, 0 offen offset:{32 * g4}")
    e.label("K2_END")
    e("s_endpgm")
    return e.text()


def kd(name, nv, acc, ns=102):
    return f""".p2align 6
.amdhsa_kernel {name}
  .amdhsa_next_free_vgpr {nv}
  .amdhsa_next_free_sgpr {ns}
  .amdhsa_accum_offset {acc}
  .amdhsa_group_segment_fixed_size 0
  .amdhsa_kernarg_size 136
  .amdhsa_user_sgpr_count 2
  .amdhsa_user_sgpr_kernarg_segment_ptr 1
  .amdhsa_system_sgpr_workgroup_id_x 1
.end_amdhsa_kernel"""


out = [hdr.rstrip(),
       f"; @launch kernel=k1_kernel grid=(256,1,1) block=(512,1,1) lds={K1_LDS}",
       f"; @launch kernel=k2_kernel grid=(256,1,1) block=(256,1,1) lds={K2_LDS}",
       '.amdgcn_target "amdgcn-amd-amdhsa--gfx950"',
       ".text",
       gen_k1(), gen_k2(),
       '.section .rodata,"a"',
       kd("k1_kernel", 256, 128),
       kd("k2_kernel", 128 + 16 * CFG["ring"], 128, 48)]
print("\n".join(out))
```

```python
import sys
from asmlib import Asm, vr, ar, sr

CFG = dict(
    fillA0=3, fillA1=1, fillB0=4, fillB1=4,
    ring=13,
    st_flag="",
    stamp=0,
    rot=1,
    probar=1,
)
for a in sys.argv[1:]:
    k, v = a.split("=")
    CFG[k] = type(CFG[k])(v) if not isinstance(CFG[k], str) else v

KS = 176
A2_OFF = 0
W2_OFF = 12 << 20
G_OFF = 16 << 20
T_OFF = 17 << 20
STAMP_OFF = 18 << 20
WS_BYTES = 20 << 20

SLOT = 37120
PAIR = 2 * SLOT
MISC = 4 * SLOT
WD_STAGE = MISC
E_AREA = MISC + 8192
K1_LDS = E_AREA + 4096
assert K1_LDS <= 163840

LOG2E = 0x3FB8AA3B
NLOG2E = 0xBFB8AA3B

hdr = open("gated_mix__ssm_conv_s5__glu_gated_glu__prompt.s.ref").read().split("; Override")[0]

P_X, P_LRE, P_LIM, P_BRE, P_BIM, P_CRE, P_CIM, P_LDT = 8, 10, 12, 14, 16, 18, 20, 22
P_DSK, P_BX, P_WG, P_WU, P_WD, P_GW, P_OUT, P_DBG, P_WS = 24, 26, 28, 30, 32, 34, 36, 38, 40
S_RB, S_CB, S_W = 5, 6, 7
S_RW, S_CW = 42, 43
SX, SBM, SWG, SWU, SWA2, SWS, ST, SDBG, ST1, ST2, ST3, ST4 = 44, 48, 52, 56, 60, 64, 68, 72, 76, 80, 84, 88
S_SO, S_NL2E, S_A2S, S_A2G, S_MX, S_MBM, S_MWA, S_T0, S_T1, S_T2 = 92, 93, 94, 95, 96, 97, 98, 99, 100, 101
S_T3, S_T4 = 3, 4
S_ROT, S_SO2, S_DX = 26, 27, 36


def srd(e, d, p, nbytes):
    e(f"s_mov_b32 s{d}, s{p}")
    e(f"s_mov_b32 s{d + 1}, s{p + 1}")
    e(f"s_mov_b32 s{d + 2}, {nbytes:#x}")
    e(f"s_mov_b32 s{d + 3}, 0x00020000")


def stamp(e, idx, wave_s, tmpv0, tmpv1, srdreg, wg_s="s2", st=None, src=None, base=STAMP_OFF):
    if not CFG["stamp"]:
        return
    st = S_T0 if st is None else st
    if src is None:
        e("s_memtime s[0:1]")
        e("s_waitcnt lgkmcnt(0)")
        e.lg = []
        src = "s0"
    e(f"s_lshl_b32 s{st}, {wg_s}, 3")
    e(f"s_add_u32 s{st}, s{st}, {wave_s}")
    e(f"s_lshl_b32 s{st}, s{st}, 7")
    e(f"s_add_u32 s{st}, s{st}, {base + idx * 4:#x}")
    e(f"v_mov_b32 v{tmpv0}, {src}")
    e(f"v_mov_b32 v{tmpv1}, 0")
    e.vmem(f"buffer_store_dword v{tmpv0}, v{tmpv1}, {sr(srdreg, 4)}, s{st} offen", "stamp")


def gen_k1():
    e = Asm()
    e.raw(".globl k1_kernel\n.p2align 8\n.type k1_kernel,@function\nk1_kernel:")
    e("s_cmp_ge_u32 s2, 256")
    e("s_cbranch_scc1 K1_END")
    e("s_load_dwordx16 s[8:23], s[0:1], 0")
    e("s_load_dwordx16 s[24:39], s[0:1], 64")
    e("s_load_dwordx2 s[40:41], s[0:1], 128")
    if CFG["stamp"]:
        e("s_memtime s[68:69]")
    V_LANE, V_I, V_POS = 1, 2, 3
    V_DX0, V_DX1, V_DBM, V_DWA, V_DWBG, V_DWBU = 4, 5, 6, 7, 8, 9
    V_DWA2 = 23
    V_XA = 10
    V_ST = 14
    V_WB = 15
    V_WA = 17
    V_BA = 17
    T0, T1, T2, T3 = 120, 121, 122, 123
    e(f"v_lshrrev_b32 v{T0}, 6, v0")
    e(f"v_and_b32 v{V_LANE}, 63, v0")
    e(f"s_and_b32 s{S_T3}, s2, 7")
    e(f"v_readfirstlane_b32 s{S_W}, v{T0}")
    e(f"s_lshr_b32 s{S_T4}, s2, 3")
    e(f"s_lshr_b32 s{S_RB}, s{S_T3}, 1")
    e(f"s_lshl_b32 s{S_RB}, s{S_RB}, 2")
    e(f"s_lshr_b32 s{S_T0}, s{S_T4}, 3")
    e(f"s_add_u32 s{S_RB}, s{S_RB}, s{S_T0}")
    e(f"s_and_b32 s{S_CB}, s{S_T3}, 1")
    e(f"s_lshl_b32 s{S_CB}, s{S_CB}, 3")
    e(f"s_and_b32 s{S_T0}, s{S_T4}, 7")
    e(f"s_add_u32 s{S_CB}, s{S_CB}, s{S_T0}")
    e(f"s_and_b32 s{S_RW}, s{S_W}, 3")
    e(f"s_lshr_b32 s{S_CW}, s{S_W}, 2")
    e(f"v_lshrrev_b32 v{V_I}, 3, v{V_LANE}")
    e(f"v_and_b32 v{V_POS}, 7, v{V_LANE}")
    e(f"s_lshl_b32 s{S_T0}, s{S_RB}, 17")
    e(f"s_lshr_b32 s{S_T1}, s{S_W}, 1")
    e(f"s_lshl_b32 s{S_T1}, s{S_T1}, 15")
    e(f"s_add_u32 s{S_T0}, s{S_T0}, s{S_T1}")
    e(f"s_and_b32 s{S_T1}, s{S_W}, 1")
    e(f"s_lshl_b32 s{S_T2}, s{S_T1}, 13")
    e(f"s_add_u32 s{S_T0}, s{S_T0}, s{S_T2}")
    e(f"v_lshrrev_b32 v{T0}, 1, v{V_I}")
    e(f"v_xor_b32 v{T1}, v{V_POS}, v{T0}")
    e(f"v_lshlrev_b32 v{T1}, 4, v{T1}")
    e(f"v_lshrrev_b32 v{T2}, 2, v{V_I}")
    e(f"v_lshlrev_b32 v{T2}, 14, v{T2}")
    e(f"v_and_b32 v{T3}, 3, v{V_I}")
    e(f"v_lshl_add_u32 v{T2}, v{T3}, 10, v{T2}")
    e(f"v_add3_u32 v{V_DX0}, v{T2}, v{T1}, s{S_T0}")
    e(f"v_xor_b32 v{V_DX1}, 64, v{V_DX0}")
    e(f"v_add_u32 v{V_DX1}, 0x1000, v{V_DX1}")
    e(f"s_lshl_b32 s{S_T2}, s{S_T1}, 6")
    e(f"v_xor_b32 v{T1}, s{S_T2}, v{T1}")
    e(f"s_lshl_b32 s{S_T0}, s{S_CB}, 15")
    e(f"s_lshl_b32 s{S_T2}, s{S_RW}, 13")
    e(f"s_add_u32 s{S_T0}, s{S_T0}, s{S_T2}")
    e(f"v_lshl_add_u32 v{V_DBM}, v{V_I}, 10, v{T1}")
    e(f"v_add_u32 v{V_DBM}, s{S_T0}, v{V_DBM}")
    e(f"s_mul_i32 s{S_T1}, s{S_RW}, 96")
    e(f"s_mul_i32 s{S_T2}, s{S_CB}, 96")
    e(f"s_add_u32 s{S_T2}, s{S_T2}, 2048")
    for vd, add in ((V_DWA, 0), (V_DWA2, 64)):
        e(f"v_add_u32 v{T0}, s{S_T1}, v{V_LANE}")
        if add:
            e(f"v_add_u32 v{T0}, {add}, v{T0}")
        e(f"v_mul_u32_u24 v{T1}, 43691, v{T0}")
        e(f"v_lshrrev_b32 v{T1}, 18, v{T1}")
        e(f"v_mul_u32_u24 v{T2}, 6, v{T1}")
        e(f"v_sub_u32 v{T2}, v{T0}, v{T2}")
        e(f"v_mul_u32_u24 v{T1}, 3584, v{T1}")
        e(f"v_lshl_add_u32 v{T1}, v{T2}, 4, v{T1}")
        e(f"v_add_u32 v{vd}, s{S_T2}, v{T1}")
    e(f"s_lshl_b32 s{S_MX}, s{S_W}, 11")
    e(f"s_lshl_b32 s{S_MBM}, s{S_W}, 10")
    e(f"s_add_u32 s{S_MBM}, s{S_MBM}, 16384")
    e(f"s_mul_i32 s{S_MWA}, s{S_RW}, 1536")
    e(f"s_mul_i32 s{S_T1}, s{S_CW}, 6272")
    e(f"s_add_u32 s{S_MWA}, s{S_MWA}, s{S_T1}")
    e(f"s_add_u32 s{S_MWA}, s{S_MWA}, 24576")
    e("s_waitcnt lgkmcnt(0)")
    e(f"s_and_b32 s{S_T1}, s{S_RB}, 3")
    e(f"s_lshl_b32 s{S_T1}, s{S_T1}, 1")
    e(f"s_add_u32 s{S_ROT}, s{S_T1}, s{S_CB}")
    if not CFG["rot"]:
        e(f"s_mov_b32 s{S_ROT}, 0")
    srd(e, SX, P_X, 2048 * 1024)
    e(f"s_cmp_eq_u32 s{S_CW}, 0")
    e(f"s_cselect_b32 s{SBM}, s{P_BRE}, s{P_BIM}")
    e(f"s_cselect_b32 s{SBM + 1}, s{P_BRE + 1}, s{P_BIM + 1}")
    e(f"s_mov_b32 s{SBM + 2}, {512 * 1024:#x}")
    e(f"s_mov_b32 s{SBM + 3}, 0x00020000")
    srd(e, SWG, P_WG, 512 * 3584)
    srd(e, SWU, P_WU, 512 * 3584)
    e(f"s_cmp_eq_u32 s{S_CW}, 0")
    e(f"s_cselect_b32 s{SWA2}, s{P_WG}, s{P_WU}")
    e(f"s_cselect_b32 s{SWA2 + 1}, s{P_WG + 1}, s{P_WU + 1}")
    e(f"s_mov_b32 s{SWA2 + 2}, {512 * 3584:#x}")
    e(f"s_mov_b32 s{SWA2 + 3}, 0x00020000")

    def dma_list(C, cw=None):
        slot = (C % 4) * SLOT
        out = []

        def mk(mbase, moff, voff, srd_, soreg, pre=(), half=False):
            def f():
                for p in pre:
                    e(p)
                e(f"s_add_u32 m0, s{mbase}, {slot + moff}")
                if half:
                    e("s_mov_b32 exec_hi, 0")
                else:
                    e("s_nop 0")
                e.vmem(f"buffer_load_dwordx4 v{voff}, {sr(srd_, 4)}, s{soreg} offen lds", ("dma", C))
                if half:
                    e("s_mov_b32 exec_hi, -1")
            return f
        if C < 8:
            pre = [f"s_add_u32 s{S_SO2}, s{S_ROT}, {C}", f"s_and_b32 s{S_SO2}, s{S_SO2}, 7",
                   f"s_lshl_b32 s{S_DX}, s{S_SO2}, 7", f"s_mul_i32 s{S_SO2}, s{S_SO2}, {64 * 3584}"]
            out.append(mk(S_MX, 0, V_DX0, SX, S_DX, pre))
            out.append(mk(S_MWA, 0, V_DWA, SWA2, S_SO2))
            out.append(mk(S_MX, 1024, V_DX1, SX, S_DX))
            out.append(mk(S_MBM, 0, V_DBM, SBM, S_DX))
            out.append(mk(S_MWA, 1024, V_DWA2, SWA2, S_SO2, half=True))
        else:
            c = C - 8
            pre = [f"s_add_u32 s{S_SO2}, s{S_ROT}, {2 * c}", f"s_add_u32 s{S_SO2}, s{S_SO2}, s{S_CW}",
                   f"s_and_b32 s{S_SO2}, s{S_SO2}, 7", f"s_mul_i32 s{S_SO2}, s{S_SO2}, {64 * 3584}",
                   f"s_add_u32 s{S_DX}, s{S_SO2}, {8 * 3584}"]
            out.append(mk(S_MX, 0, V_DWBG, SWG, S_SO2, pre))
            out.append(mk(S_MX, 16384, V_DWBU, SWU, S_SO2))
            out.append(mk(S_MX, 1024, V_DWBG, SWG, S_DX))
            out.append(mk(S_MX, 16384 + 1024, V_DWBU, SWU, S_DX))
        return out

    for C in range(4):
        for f in dma_list(C):
            f()
        if C < 3 and CFG["probar"]:
            e("s_barrier")
    e(f"s_cmp_eq_u32 s{S_CW}, 0")
    e("s_cbranch_scc0 K1_ROLE1")
    pro_vm = list(e.vm)

    def common_addr():
        e(f"v_lshrrev_b32 v{T0}, 1, v{V_POS}")
        e(f"v_bfe_u32 v{T1}, v{V_I}, 1, 1")
        e(f"v_xor_b32 v{T0}, v{T0}, v{T1}")
        e(f"v_lshlrev_b32 v{T0}, 5, v{T0}")
        e(f"v_and_b32 v{T1}, 1, v{V_POS}")
        e(f"v_lshl_add_u32 v{T0}, v{T1}, 4, v{T0}")
        e(f"v_mul_u32_u24 v{T1}, 3584, v{V_I}")
        e(f"s_mul_i32 s{S_T0}, s{S_RW}, {16 * 3584}")
        e(f"s_lshl_b32 s{S_T1}, s{S_CB}, 7")
        e(f"s_add_u32 s{S_T0}, s{S_T0}, s{S_T1}")
        e(f"v_add3_u32 v{V_DWBG}, v{T0}, v{T1}, s{S_T0}")
        e(f"v_xor_b32 v{V_DWBU}, 64, v{V_DWBG}")
        e(f"v_and_b32 v{T0}, 31, v{V_LANE}")
        e(f"v_lshrrev_b32 v{T1}, 5, v{V_LANE}")
        e(f"v_bfe_u32 v{T2}, v{V_LANE}, 1, 3")
        e(f"v_xor_b32 v{T2}, v{T2}, v{T1}")
        e(f"v_lshlrev_b32 v{T2}, 4, v{T2}")
        e(f"v_lshl_add_u32 v{T2}, v{T0}, 7, v{T2}")
        e(f"s_lshl_b32 s{S_T0}, s{S_RW}, 12")
        e(f"v_add_u32 v{V_XA}, s{S_T0}, v{T2}")
        for s in range(1, 4):
            e(f"v_xor_b32 v{V_XA + s}, {32 * s}, v{V_XA}")
        e(f"v_lshlrev_b32 v{V_ST}, 4, v{V_LANE}")
        e(f"v_bfe_u32 v{T0}, v{V_LANE}, 2, 2")
        e(f"v_lshl_add_u32 v{T0}, v{T1}, 3, v{T0}")
        e(f"v_bfe_u32 v{T1}, v{V_LANE}, 4, 1")
        e(f"v_and_b32 v{T3}, 3, v{V_LANE}")
        e(f"v_lshlrev_b32 v{T3}, 3, v{T3}")
        e(f"v_lshlrev_b32 v{V_WB}, 14, v{T1}")
        e(f"v_lshl_add_u32 v{V_WB}, v{T0}, 7, v{V_WB}")
        e(f"v_add_u32 v{V_WB}, v{V_WB}, v{T3}")
        e(f"v_bfe_u32 v{V_WB + 1}, v{V_LANE}, 3, 2")
        e(f"s_lshl_b32 s{S_T0}, s{S_CW}, 1")
        e(f"v_xor_b32 v{V_WB + 1}, s{S_T0}, v{V_WB + 1}")
        e(f"v_lshl_add_u32 v{V_WB}, v{V_WB + 1}, 5, v{V_WB}")
        e(f"v_xor_b32 v{V_WB + 1}, 32, v{V_WB}")
        srd(e, SWS, P_WS, WS_BYTES)
        e(f"s_mov_b32 s{S_NL2E}, {NLOG2E:#x}")
        e(f"s_lshl_b32 s{S_T0}, s{S_RB}, 1")
        e(f"s_lshr_b32 s{S_T1}, s{S_RW}, 1")
        e(f"s_add_u32 s{S_T0}, s{S_T0}, s{S_T1}")
        e(f"s_mul_i32 s{S_T0}, s{S_T0}, {KS * 2048}")
        e(f"s_and_b32 s{S_T1}, s{S_RW}, 1")
        e(f"s_lshl_b32 s{S_T1}, s{S_T1}, 10")
        e(f"s_add_u32 s{S_T0}, s{S_T0}, s{S_T1}")
        e(f"s_lshl_b32 s{S_T1}, s{S_CB}, 13")
        e(f"s_add_u32 s{S_A2S}, s{S_T0}, s{S_T1}")
        e(f"s_mul_i32 s{S_T1}, s{S_CB}, {7 * 2048}")
        e(f"s_add_u32 s{S_A2G}, s{S_T0}, s{S_T1}")
        e(f"s_add_u32 s{S_A2G}, s{S_A2G}, {64 * 2048}")

    def glu_epilogue(acc, jt):
        it = []
        for i in range(8):
            it.append(f"v_mul_f32 v{acc + i}, s{S_NL2E}, v{acc + i}")
        for i in range(8):
            it.append(f"v_exp_f32 v{acc + i}, v{acc + i}")
        for i in range(8):
            it.append(f"v_add_f32 v{acc + i}, 1.0, v{acc + i}")
        for i in range(8):
            it.append(f"v_rcp_f32 v{acc + i}, v{acc + i}")
        for i in range(8):
            it.append(f"v_mul_f32 v{acc + i}, v{acc + i}, v{acc + 8 + i}")
        for i in range(4):
            it.append(f"v_cvt_pk_bf16_f32 v{acc + 8 + i}, v{acc + 2 * i}, v{acc + 2 * i + 1}")
        it.append(f"s_add_u32 s{S_SO}, s{S_A2G}, {jt * 2048}")
        it.append(lambda: e.vmem(
            f"buffer_store_dwordx4 {vr(acc + 8, 4)}, v{V_ST}, {sr(SWS, 4)}, s{S_SO} offen {CFG['st_flag']}", "st"))
        a, b = it[-2], it[-1]
        it = it[:-2]
        it.append(lambda: (e(a), b()))
        return it

    steps = [("A", c, s) for c in range(8) for s in range(4)] + [("B", c, s) for c in range(4) for s in range(8)]

    def chunk_of(st):
        return st[1] if st[0] == "A" else 8 + st[1]

    def main_loop(cw, issue_reads, mfmas, hooks, nfillA, nfillB):
        e.wait_vm(("dma", 0))
        e("s_barrier")
        stamp(e, 1, f"s{S_W}", T0, T1, SWS)
        issue_reads(0)
        for n, st in enumerate(steps):
            nxt = steps[n + 1] if n + 1 < len(steps) else None
            if nxt is not None:
                C = chunk_of(nxt)
                if nxt[2] == 0:
                    if ("pre", C) in hooks:
                        hooks[("pre", C)]()
                    e.wait_lg_all()
                    e.wait_vm(("dma", C))
                    e("s_barrier")
                    stamp(e, 8 + C, f"s{S_W}", 124, 125, SWS)
                    if C + 3 <= 11:
                        e.fill_q[0:0] = dma_list(C + 3, cw)
                    if ("post", C) in hooks:
                        hooks[("post", C)]()
                issue_reads(n + 1)
            e.wait_lg(("rd", n))
            mfmas(n, nfillA if st[0] == "A" else nfillB)
            if ("step", n) in hooks:
                hooks[("step", n)]()

    def toggle(C, regsA, regsB):
        if C in (2, 6):
            for r_ in regsA:
                e(f"v_add_u32 v{r_}, {PAIR}, v{r_}")
        elif C == 4:
            for r_ in regsA:
                e(f"v_subrev_u32 v{r_}, {PAIR}, v{r_}")
        elif C == 10:
            for r_ in regsB:
                e(f"v_add_u32 v{r_}, {PAIR}, v{r_}")

    ACC_RE, ACC_IM, ACC_B0, ACC_B1 = 24, 40, 56, 72
    FR = 88
    LR, LI, L16R, L16I, L128R, L128I, LSR, LSI, CR2, CI2, CAR, CAI = range(104, 116)
    V_EA = 116
    V_SIDE = 21
    common_addr()
    stamp(e, 0, f"s{S_W}", 124, 125, SWS)
    stamp(e, 5, f"s{S_W}", 126, 127, SWS, src="s68")
    e(f"s_lshl_b32 s{S_T0}, s{S_RW}, 12")
    e(f"s_sub_u32 s{S_T0}, 16384, s{S_T0}")
    for s in range(4):
        e(f"v_add_u32 v{V_BA + s}, s{S_T0}, v{V_XA + s}")
    SJ = ACC_B0
    R_PAR = SJ
    R_C = SJ + 4
    R_X0, R_X1, R_GW = SJ + 8, SJ + 12, SJ + 16
    R_WD = SJ + 20
    R_TA = SJ + 28
    srd(e, ST1, P_LRE, 1024)
    srd(e, ST2, P_LIM, 1024)
    srd(e, ST3, P_LDT, 1024)
    e(f"v_and_b32 v{R_TA}, 31, v{V_LANE}")
    e(f"s_lshl_b32 s{S_T0}, s{S_CB}, 6")
    e(f"v_lshl_add_u32 v{R_TA + 1}, v{R_TA}, 1, s{S_T0}")
    e.vmem(f"buffer_load_ushort v{R_PAR}, v{R_TA + 1}, {sr(ST1, 4)}, 0 offen", "sj")
    e.vmem(f"buffer_load_ushort v{R_PAR + 1}, v{R_TA + 1}, {sr(ST2, 4)}, 0 offen", "sj")
    e.vmem(f"buffer_load_ushort v{R_PAR + 2}, v{R_TA + 1}, {sr(ST3, 4)}, 0 offen", "sj")
    e(f"s_cmp_lt_u32 s{S_RW}, 2")
    e(f"s_cselect_b32 s{ST4}, s{P_CRE}, s{P_CIM}")
    e(f"s_cselect_b32 s{ST4 + 1}, s{P_CRE + 1}, s{P_CIM + 1}")
    e(f"s_mov_b32 s{ST4 + 2}, {512 * 1024:#x}")
    e(f"s_mov_b32 s{ST4 + 3}, 0x00020000")
    e(f"v_lshrrev_b32 v{R_TA + 2}, 5, v{V_LANE}")
    e(f"v_lshlrev_b32 v{R_TA + 1}, 10, v{R_TA}")
    e(f"v_lshl_add_u32 v{R_TA + 1}, v{R_TA + 2}, 4, v{R_TA + 1}")
    e(f"s_lshl_b32 s{S_T0}, s{S_RB}, 15")
    e(f"s_lshl_b32 s{S_T1}, s{S_CB}, 6")
    e(f"s_add_u32 s{S_T0}, s{S_T0}, s{S_T1}")
    e(f"s_and_b32 s{S_T1}, s{S_RW}, 1")
    e(f"s_lshl_b32 s{S_T1}, s{S_T1}, 5")
    e(f"s_add_u32 s{S_T0}, s{S_T0}, s{S_T1}")
    e.vmem(f"buffer_load_dwordx4 {vr(R_C, 4)}, v{R_TA + 1}, {sr(ST4, 4)}, s{S_T0} offen", "sj")
    e(f"s_lshl_b32 s{S_T0}, s{S_RB}, 7")
    e(f"s_lshl_b32 s{S_T1}, s{S_CB}, 3")
    e(f"s_add_u32 s{S_T0}, s{S_T0}, s{S_T1}")
    e(f"s_lshl_b32 s{S_T1}, s{S_RW}, 1")
    S_GROW = S_T3
    e(f"s_add_u32 s{S_GROW}, s{S_T0}, s{S_T1}")
    e(f"s_lshl_b32 s{S_T0}, s{S_GROW}, 10")
    e.vmem(f"buffer_load_dwordx4 {vr(R_X0, 4)}, v{V_ST}, {sr(SX, 4)}, s{S_T0} offen", "sj")
    e.vmem(f"buffer_load_dwordx4 {vr(R_X1, 4)}, v{V_ST}, {sr(SX, 4)}, s{S_T0} offen offset:1024", "sj")
    srd(e, ST1, P_GW, 1024)
    e.vmem(f"buffer_load_dwordx4 {vr(R_GW, 4)}, v{V_ST}, {sr(ST1, 4)}, 0 offen", "sj")
    srd(e, ST2, P_WD, 1792 * 1024)
    e(f"v_lshrrev_b32 v{R_TA + 1}, 2, v{V_LANE}")
    e(f"v_lshlrev_b32 v{R_TA + 1}, 10, v{R_TA + 1}")
    e(f"v_and_b32 v{R_TA + 3}, 3, v{V_LANE}")
    e(f"v_lshl_add_u32 v{R_TA + 1}, v{R_TA + 3}, 4, v{R_TA + 1}")
    S_JT1 = S_T4
    e(f"s_add_u32 s{S_JT1}, s{S_RW}, 4")
    e(f"s_min_u32 s{S_JT1}, s{S_JT1}, 6")
    for idx, sj in enumerate((S_RW, S_JT1)):
        e(f"s_mul_i32 s{S_T0}, s{S_CB}, 48")
        e(f"s_add_u32 s{S_T0}, s{S_T0}, 1024")
        e(f"s_lshl_b32 s{S_T1}, s{S_CB}, 6")
        e(f"s_sub_u32 s{S_T1}, s{S_T1}, 48")
        e(f"s_cmp_lt_u32 s{sj}, 3")
        e(f"s_cselect_b32 s{S_T0}, s{S_T0}, s{S_T1}")
        e(f"s_lshl_b32 s{S_T1}, s{sj}, 4")
        e(f"s_add_u32 s{S_T0}, s{S_T0}, s{S_T1}")
        e(f"s_lshl_b32 s{S_T0}, s{S_T0}, 10")
        e(f"s_lshl_b32 s{S_T1}, s{S_RB}, 6")
        e(f"s_add_u32 s{S_T0}, s{S_T0}, s{S_T1}")
        e(f"s_add_u32 m0, s{S_MX}, {WD_STAGE + idx * 1024}")
        e("s_nop 0")
        e.vmem(f"buffer_load_dwordx4 v{R_TA + 1}, {sr(ST2, 4)}, s{S_T0} offen lds", "sj")
    e(f"s_lshl_b32 s{S_T0}, s{S_RW}, 9")
    e(f"s_add_u32 s{S_T0}, s{S_T0}, {E_AREA}")
    e(f"v_lshlrev_b32 v{V_EA}, 8, v{R_TA + 2}")
    e(f"v_lshl_add_u32 v{V_EA}, v{R_TA}, 3, v{V_EA}")
    e(f"v_add_u32 v{V_EA}, s{S_T0}, v{V_EA}")
    e(f"v_mov_b32 v118, 0")
    e(f"v_mov_b32 v119, 0")
    e.ds(f"ds_write_b64 v{V_EA}, v[118:119]", "z")
    V_WDA = V_SIDE
    e(f"v_bfe_u32 v{V_WDA}, v{V_LANE}, 2, 2")
    e(f"v_lshl_add_u32 v{V_WDA}, v{R_TA + 2}, 2, v{V_WDA}")
    e(f"v_lshlrev_b32 v{V_WDA}, 6, v{V_WDA}")
    e(f"v_lshl_add_u32 v{V_WDA}, v{T1}, 5, v{V_WDA}")
    e(f"v_add3_u32 v{V_WDA}, v{V_WDA}, v{T3}, s{S_MX}")

    def cmul(dr, di, ar_, ai, br, bi, t):
        return [f"v_mul_f32 v{t}, v{ai}, v{bi}",
                f"v_mul_f32 v{t + 1}, v{ar_}, v{bi}",
                f"v_fma_f32 v{t}, v{ar_}, v{br}, -v{t}",
                f"v_fma_f32 v{di}, v{ai}, v{br}, v{t + 1}",
                f"v_mov_b32 v{dr}, v{t}"]

    def side_jobs():
        it = []
        it.append(lambda: e.wait_vm("sj"))
        def cstore():
            e(f"s_lshr_b32 s{S_T0}, s{S_RB}, 1")
            e(f"s_mul_i32 s{S_T0}, s{S_T0}, {KS * 2048}")
            e(f"s_and_b32 s{S_T1}, s{S_RB}, 1")
            e(f"s_lshl_b32 s{S_T1}, s{S_T1}, 10")
            e(f"s_add_u32 s{S_T2}, s{S_T0}, s{S_T1}")
            e(f"s_add_u32 s{S_T2}, s{S_T2}, {W2_OFF:#x}")
            e(f"s_lshl_b32 s{S_T0}, s{S_CB}, 2")
            e(f"s_add_u32 s{S_T0}, s{S_T0}, s{S_RW}")
            e(f"s_lshl_b32 s{S_T0}, s{S_T0}, 11")
            e(f"s_add_u32 s{S_T0}, s{S_T0}, s{S_T2}")
            e.vmem(f"buffer_store_dwordx4 {vr(R_C, 4)}, v{V_ST}, {sr(SWS, 4)}, s{S_T0} offen {CFG['st_flag']}", "st")
        it.append(cstore)
        for idx in range(2):
            for u in range(2):
                it.append(lambda idx=idx, u=u: e.ds(
                    f"ds_read_b64_tr_b16 {vr(R_WD + 4 * idx + 2 * u, 2)}, v{V_WDA} offset:{WD_STAGE - 131072 + idx * 1024 + u * 512}", "wd"))
        P0, P1, P2 = R_PAR, R_PAR + 1, R_PAR + 2
        tt = R_TA
        it += [f"v_lshlrev_b32 v{P0}, 16, v{P0}",
               f"v_lshlrev_b32 v{P1}, 16, v{P1}",
               f"v_lshlrev_b32 v{P2}, 16, v{P2}",
               f"v_mul_f32 v{P2}, {LOG2E:#x}, v{P2}",
               f"v_exp_f32 v{P2}, v{P2}",
               "s_nop 0",
               f"v_cvt_pk_bf16_f32 v{P2}, v{P2}, v{P2}",
               f"v_lshlrev_b32 v{P2}, 16, v{P2}",
               f"v_mul_f32 v{tt}, v{P2}, v{P0}",
               f"v_mul_f32 v{tt + 1}, v{P2}, v{P1}",
               f"v_mul_f32 v{tt}, {LOG2E:#x}, v{tt}",
               f"v_mul_f32 v{tt + 1}, 0.15915494, v{tt + 1}",
               f"v_exp_f32 v{tt}, v{tt}",
               f"v_rndne_f32 v{tt + 2}, v{tt + 1}",
               f"v_sub_f32 v{tt + 1}, v{tt + 1}, v{tt + 2}",
               f"v_cos_f32 v{LR}, v{tt + 1}",
               f"v_sin_f32 v{LI}, v{tt + 1}",
               f"v_mul_f32 v{tt + 2}, v{P0}, v{P0}",
               f"v_mul_f32 v{LR}, v{LR}, v{tt}",
               f"v_mul_f32 v{LI}, v{LI}, v{tt}",
               f"v_fmac_f32 v{tt + 2}, v{P1}, v{P1}",
               f"v_add_f32 v{tt}, -1.0, v{LR}",
               f"v_rcp_f32 v{tt + 2}, v{tt + 2}",
               f"v_mul_f32 v{CR2}, v{tt}, v{P0}",
               f"v_mul_f32 v{CI2}, v{LI}, v{P0}",
               f"v_fmac_f32 v{CR2}, v{LI}, v{P1}",
               f"v_fma_f32 v{CI2}, -v{tt}, v{P1}, v{CI2}",
               f"v_add_f32 v{tt + 2}, v{tt + 2}, v{tt + 2}",
               f"v_mul_f32 v{CR2}, v{CR2}, v{tt + 2}",
               f"v_mul_f32 v{CI2}, v{CI2}, v{tt + 2}"]
        it += cmul(L16R, L16I, LR, LI, LR, LI, tt)
        for _ in range(3):
            it += cmul(L16R, L16I, L16R, L16I, L16R, L16I, tt)
        it += [f"v_cmp_lt_u32 vcc, 31, v{V_LANE}",
               f"v_mov_b32 v{LSI}, 0",
               f"v_mov_b32 v{LSR}, 1.0",
               f"v_cndmask_b32 v{LSI}, v{LSI}, v{L16I}, vcc",
               f"v_cndmask_b32 v{LSR}, v{LSR}, v{L16R}, vcc"]
        it += cmul(L128R, L128I, L16R, L16I, L16R, L16I, tt)
        for bit in range(2):
            it += cmul(CAR, CAI, LSR, LSI, L128R, L128I, tt)
            it.append(lambda bit=bit: (e(f"s_bitcmp1_b32 s{S_RW}, {bit}"), e("s_cselect_b64 vcc, -1, 0")))
            it += ["s_nop 1",
                   f"v_cndmask_b32 v{LSR}, v{LSR}, v{CAR}, vcc",
                   f"v_cndmask_b32 v{LSI}, v{LSI}, v{CAI}, vcc"]
            it += cmul(L128R, L128I, L128R, L128I, L128R, L128I, tt)
        it.append(lambda: e.wait_lg("wd"))
        for idx, sj in enumerate((S_RW, S_JT1)):
            def wst(idx=idx, sj=sj):
                e(f"s_mul_i32 s{S_T0}, s{S_CB}, 7")
                e(f"s_add_u32 s{S_T0}, s{S_T0}, s{sj}")
                e(f"s_add_u32 s{S_T0}, s{S_T0}, 64")
                e(f"s_lshl_b32 s{S_T0}, s{S_T0}, 11")
                e(f"s_add_u32 s{S_T0}, s{S_T0}, s{S_T2}")
                e.vmem(f"buffer_store_dwordx4 {vr(R_WD + 4 * idx, 4)}, v{V_ST}, {sr(SWS, 4)}, s{S_T0} offen {CFG['st_flag']}", "st")
            it.append(wst)
        g0, g1 = R_PAR, R_PAR + 1
        wl, wh, a0, a1 = R_C, R_C + 1, R_C + 2, R_C + 3
        it += [f"v_mov_b32 v{g0}, 0", f"v_mov_b32 v{g1}, 0"]
        for d in range(4):
            it += [f"v_lshlrev_b32 v{wl}, 16, v{R_GW + d}",
                   f"v_and_b32 v{wh}, 0xffff0000, v{R_GW + d}"]
            for rx, g in ((R_X0, g0), (R_X1, g1)):
                it += [f"v_lshlrev_b32 v{a0}, 16, v{rx + d}",
                       f"v_and_b32 v{a1}, 0xffff0000, v{rx + d}",
                       f"v_mul_f32 v{a0}, v{a0}, v{wl}",
                       f"v_mul_f32 v{a1}, v{a1}, v{wh}",
                       f"v_cvt_pk_bf16_f32 v{a0}, v{a0}, v{a1}",
                       f"v_and_b32 v{a1}, 0xffff0000, v{a0}",
                       f"v_lshlrev_b32 v{a0}, 16, v{a0}",
                       f"v_add_f32 v{g}, v{g}, v{a1}",
                       f"v_add_f32 v{g}, v{g}, v{a0}"]
        for d in ("row_shr:1 row_mask:0xf bank_mask:0xf", "row_shr:2 row_mask:0xf bank_mask:0xf",
                  "row_shr:4 row_mask:0xf bank_mask:0xf", "row_shr:8 row_mask:0xf bank_mask:0xf",
                  "row_bcast:15 row_mask:0xa bank_mask:0xf", "row_bcast:31 row_mask:0xc bank_mask:0xf"):
            it += ["s_nop 1",
                   f"v_add_f32_dpp v{g0}, v{g0}, v{g0} {d}",
                   f"v_add_f32_dpp v{g1}, v{g1}, v{g1} {d}"]

        def gfin():
            e("s_nop 1")
            e(f"v_readlane_b32 s{S_T0}, v{g0}, 63")
            e(f"v_readlane_b32 s{S_T1}, v{g1}, 63")
            e("s_nop 1")
            e(f"v_mov_b32 v{a0}, s{S_T0}")
            e(f"v_writelane_b32 v{a0}, s{S_T1}, 1")
        it.append(gfin)
        it += ["s_nop 0",
               f"v_cvt_pk_bf16_f32 v{a0}, v{a0}, v{a0}",
               f"v_lshlrev_b32 v{a0}, 16, v{a0}",
               f"v_mul_f32 v{a0}, s{S_NL2E}, v{a0}",
               f"v_exp_f32 v{a0}, v{a0}",
               f"v_lshlrev_b32 v{wl}, 3, v{V_LANE}",
               f"v_add_f32 v{a0}, 1.0, v{a0}",
               f"v_cmp_gt_u32 vcc, 2, v{V_LANE}",
               f"v_rcp_f32 v{a0}, v{a0}",
               f"v_mov_b32 v{wh}, 0x7ffffff0",
               f"v_cvt_pk_bf16_f32 v{a0}, v{a0}, v{a0}",
               f"v_cndmask_b32 v{wl}, v{wh}, v{wl}, vcc",
               f"v_lshlrev_b32 v{a0}, 16, v{a0}",
               f"v_sub_f32 v{a1}, 1.0, v{a0}",
               f"v_cvt_pk_bf16_f32 v{a1}, v{a1}, v{a1}",
               f"v_lshlrev_b32 v{a1}, 16, v{a1}"]

        def gst():
            e(f"s_lshl_b32 s{S_T0}, s{S_GROW}, 3")
            e(f"s_add_u32 s{S_T0}, s{S_T0}, {G_OFF:#x}")
            e.vmem(f"buffer_store_dwordx2 {vr(a0, 2)}, v{wl}, {sr(SWS, 4)}, s{S_T0} offen {CFG['st_flag']}", "st")
        it.append(gst)
        return it

    e(f"v_add_u32 v{V_WDA}, 131072, v{V_WDA}")

    def reads0(n):
        st = steps[n]
        C = chunk_of(st)
        if st[2] == 0:
            toggle(C, [V_XA + i for i in range(4)] + [V_BA + i for i in range(4)], [V_WB, V_WB + 1])
        lo = (C % 2) * SLOT
        fb = FR + 8 * (n % 2)
        if st[0] == "A":
            s = st[2]
            e.ds(f"ds_read_b128 {ar(4 * n, 4)}, v{V_XA + s} offset:{lo}", ("rd", n))
            e.ds(f"ds_read_b128 {vr(fb, 4)}, v{V_BA + s} offset:{lo}", ("rd", n))
            e.ds(f"ds_read_b128 {vr(fb + 4, 4)}, v{V_BA + s} offset:{lo + 4096}", ("rd", n))
        else:
            s = st[2]
            for j in range(2):
                for u in range(2):
                    e.ds(f"ds_read_b64_tr_b16 {vr(fb + 4 * j + 2 * u, 2)}, v{V_WB + j} offset:{lo + (16 * s + 4 * u) * 128}", ("rd", n))

    def mf(acc, a, b, first):
        c = "0" if first else vr(acc, 16)
        e(f"v_mfma_f32_32x32x16_bf16 {vr(acc, 16)}, {a}, {b}, {c}")

    def mfmas0(n, nf):
        st = steps[n]
        fb = FR + 8 * (n % 2)
        if st[0] == "A":
            for j, acc in enumerate((ACC_RE, ACC_IM)):
                mf(acc, ar(4 * n, 4), vr(fb + 4 * j, 4), n == 0)
                e.fill(nf)
        else:
            k = n - 32
            for j, acc in enumerate((ACC_B0, ACC_B1)):
                mf(acc, vr(fb + 4 * j, 4), ar(4 * k, 4), k == 0)
                e.fill(nf)

    ER, EI, TT = 117, 118, 119
    ER, EI = 118, 119
    TQ = 117

    def ssm_p1():
        it = []
        it += [f"v_mov_b32 v{ER}, v{ACC_RE}", f"v_mov_b32 v{EI}, v{ACC_IM}"]
        for i in range(1, 16):
            it += [f"v_fma_f32 v{TQ}, v{LR}, v{ER}, v{ACC_RE + i}",
                   f"v_fma_f32 v{T0}, v{LR}, v{EI}, v{ACC_IM + i}",
                   f"v_fma_f32 v{TQ}, -v{LI}, v{EI}, v{TQ}",
                   f"v_fma_f32 v{EI}, v{LI}, v{ER}, v{T0}",
                   f"v_mov_b32 v{ER}, v{TQ}"]
        it.append(lambda: e.ds(f"ds_write_b64 v{V_EA}, {vr(ER, 2)} offset:2048", "e"))
        return it

    EB = 2
    def ssm_p2():
        it = []
        regs = [2, 4, 6, 8, 10, 12, 18]
        for j in range(6, -1, -1):
            it.append(lambda j=j: e.ds(f"ds_read_b64 {vr(regs[j], 2)}, v{V_EA} offset:{2048 - 256 * (j + 1)}", "pe"))
        it.append(lambda: e.wait_lg("pe"))
        it += [f"v_mov_b32 v{CAR}, v{regs[6]}", f"v_mov_b32 v{CAI}, v{regs[6] + 1}"]
        for j in range(5, -1, -1):
            it += [f"v_fma_f32 v{TQ}, v{L16R}, v{CAR}, v{regs[j]}",
                   f"v_fma_f32 v{T0}, v{L16R}, v{CAI}, v{regs[j] + 1}",
                   f"v_fma_f32 v{TQ}, -v{L16I}, v{CAI}, v{TQ}",
                   f"v_fma_f32 v{CAI}, v{L16I}, v{CAR}, v{T0}",
                   f"v_mov_b32 v{CAR}, v{TQ}"]
        it += [f"v_fma_f32 v{ER}, v{L16R}, v{CAR}, v{ER}",
               f"v_fma_f32 v{EI}, v{L16R}, v{CAI}, v{EI}",
               f"v_fma_f32 v{ER}, -v{L16I}, v{CAI}, v{ER}",
               f"v_fma_f32 v{EI}, v{L16I}, v{CAR}, v{EI}"]

        def publish():
            e(f"s_lshl_b32 s{S_T0}, s{S_CB}, 12")
            e(f"s_add_u32 s{S_T0}, s{S_T0}, {T_OFF:#x}")
            e(f"s_add_u32 s{ST}, s{P_WS}, s{S_T0}")
            e(f"s_addc_u32 s{ST + 1}, s{P_WS + 1}, 0")
            e(f"s_mov_b32 s{ST + 2}, 4096")
            e(f"s_mov_b32 s{ST + 3}, 0x00020000")
            srd(e, SDBG, P_DBG, 256)
            e(f"s_cmp_eq_u32 s{S_RW}, 3")
            e("s_cbranch_scc0 K1_NOPUB")
            e(f"s_cmp_eq_u32 s{S_RB}, 15")
            e("s_cbranch_scc1 K1_NOPUB")
            e(f"v_lshlrev_b32 v{T0}, 3, v{V_LANE}")
            e(f"s_lshl_b32 s{S_T0}, s{S_RB}, 8")
            e(f"s_sub_u32 s{S_T0}, s{S_T0}, 256")
            e(f"v_add_u32 v{T0}, s{S_T0}, v{T0}")
            e(f"v_cmp_lt_u32 vcc, 31, v{V_LANE}")
            e(f"v_mov_b32 v{T1}, 0x7ffffff0")
            e("s_nop 0")
            e(f"v_cndmask_b32 v{T0}, v{T1}, v{T0}, vcc")
            e(f"buffer_store_dwordx2 {vr(ER, 2)}, v{T0}, {sr(ST, 4)}, 0 offen sc1")
            e(f"s_lshl_b32 s{S_T0}, 1, s{S_RB}")
            e(f"v_mov_b32 v{T2}, s{S_T0}")
            e(f"s_lshl_b32 s{S_T0}, s{S_CB}, 2")
            e(f"v_mov_b32 v{T0}, s{S_T0}")
            e("s_waitcnt vmcnt(0)")
            e("s_mov_b64 exec, 1")
            e(f"buffer_atomic_or v{T2}, v{T0}, {sr(SDBG, 4)}, 0 offen")
            e("s_mov_b64 exec, -1")
            e.label("K1_NOPUB")
        it.append(publish)
        return it

    def ssm_p3():
        GB = FR
        e(f"v_mov_b32 v{T2}, 0")
        e(f"v_mov_b32 v{ER}, 0")
        e(f"v_mov_b32 v{EI}, 0")
        e(f"s_cmp_eq_u32 s{S_RB}, 0")
        e("s_cbranch_scc1 K1_NOG")
        e(f"s_lshl_b32 s{S_T1}, 1, s{S_RB}")
        e(f"s_sub_u32 s{S_T1}, s{S_T1}, 1")
        e(f"s_lshl_b32 s{S_T2}, s{S_CB}, 2")
        e(f"s_mov_b32 s{S_SO}, 0x40000")
        e.label("K1_POLL")
        e(f"buffer_load_dword v{T0}, v{T2}, {sr(SDBG, 4)}, s{S_T2} offen sc1")
        e("s_waitcnt vmcnt(0)")
        e(f"v_readfirstlane_b32 s{S_T0}, v{T0}")
        e(f"s_and_b32 s{S_T0}, s{S_T0}, s{S_T1}")
        e(f"s_cmp_eq_u32 s{S_T0}, s{S_T1}")
        e("s_cbranch_scc1 K1_POLLED")
        e("s_sleep 2")
        e(f"s_sub_u32 s{S_SO}, s{S_SO}, 1")
        e(f"s_cmp_lg_u32 s{S_SO}, 0")
        e("s_cbranch_scc1 K1_POLL")
        e.label("K1_POLLED")
        tregs = [2, 4, 6, 8, 10, 12, 18, 20] + [FR + 2 * i for i in range(7)]
        e(f"v_and_b32 v{T0}, 31, v{V_LANE}")
        e(f"v_lshlrev_b32 v{T0}, 3, v{T0}")
        e(f"s_lshl_b32 s{S_T0}, s{S_RB}, 8")
        e(f"s_sub_u32 s{S_T0}, s{S_T0}, {15 * 256}")
        e(f"v_add_u32 v{T0}, s{S_T0}, v{T0}")
        for j in range(14, -1, -1):
            e(f"buffer_load_dwordx2 {vr(tregs[j], 2)}, v{T0}, {sr(ST, 4)}, 0 offen sc1")
            if j:
                e(f"v_add_u32 v{T0}, 256, v{T0}")
        for j in range(14, -1, -1):
            e(f"s_waitcnt vmcnt({j})")
            e(f"v_fma_f32 v{TQ}, v{L128R}, v{ER}, v{tregs[j]}")
            e(f"v_fma_f32 v{T0}, v{L128R}, v{EI}, v{tregs[j] + 1}")
            e(f"v_fma_f32 v{TQ}, -v{L128I}, v{EI}, v{TQ}")
            e(f"v_fma_f32 v{EI}, v{L128I}, v{ER}, v{T0}")
            e(f"v_mov_b32 v{ER}, v{TQ}")
        e.label("K1_NOG")
        e.vm = []
        e(f"v_fma_f32 v{CAR}, v{LSR}, v{ER}, v{CAR}")
        e(f"v_fma_f32 v{CAI}, v{LSR}, v{EI}, v{CAI}")
        e(f"v_fma_f32 v{CAR}, -v{LSI}, v{EI}, v{CAR}")
        e(f"v_fma_f32 v{CAI}, v{LSI}, v{ER}, v{CAI}")
        hr, hi = CAR, CAI
        for i in range(16):
            e(f"v_fma_f32 v{ACC_RE + i}, v{LR}, v{hr}, v{ACC_RE + i}")
            e(f"v_fma_f32 v{ACC_IM + i}, v{LR}, v{hi}, v{ACC_IM + i}")
            e(f"v_fma_f32 v{ACC_RE + i}, -v{LI}, v{hi}, v{ACC_RE + i}")
            e(f"v_fma_f32 v{ACC_IM + i}, v{LI}, v{hr}, v{ACC_IM + i}")
            if i:
                k = i - 1
                e(f"v_mul_f32 v{TQ}, v{CI2}, v{ACC_IM + k}")
                e(f"v_mul_f32 v{T0}, v{CI2}, v{ACC_RE + k}")
                e(f"v_fma_f32 v{ACC_RE + k}, v{CR2}, v{ACC_RE + k}, -v{TQ}")
                e(f"v_fma_f32 v{ACC_IM + k}, -v{CR2}, v{ACC_IM + k}, -v{T0}")
            hr, hi = ACC_RE + i, ACC_IM + i
        k = 15
        e(f"v_mul_f32 v{TQ}, v{CI2}, v{ACC_IM + k}")
        e(f"v_mul_f32 v{T0}, v{CI2}, v{ACC_RE + k}")
        e(f"v_fma_f32 v{ACC_RE + k}, v{CR2}, v{ACC_RE + k}, -v{TQ}")
        e(f"v_fma_f32 v{ACC_IM + k}, -v{CR2}, v{ACC_IM + k}, -v{T0}")
        for base in (ACC_RE, ACC_IM):
            for i in range(8):
                e(f"v_cvt_pk_bf16_f32 v{base + i}, v{base + 2 * i}, v{base + 2 * i + 1}")
        e(f"s_mul_i32 s{S_T0}, s{S_RW}, {SLOT}")
        e(f"s_add_u32 s{S_T0}, s{S_T0}, 32768")
        e(f"v_and_b32 v{T0}, 31, v{V_LANE}")
        e(f"v_lshlrev_b32 v{T0}, 6, v{T0}")
        e(f"v_lshrrev_b32 v{T1}, 5, v{V_LANE}")
        e(f"v_lshl_add_u32 v{T0}, v{T1}, 5, v{T0}")
        e(f"v_add_u32 v{T0}, s{S_T0}, v{T0}")
        e(f"ds_write_b128 v{T0}, {vr(ACC_RE, 4)}")
        e(f"ds_write_b128 v{T0}, {vr(ACC_RE + 4, 4)} offset:16")
        e(f"ds_write_b128 v{T0}, {vr(ACC_IM, 4)} offset:2048")
        e(f"ds_write_b128 v{T0}, {vr(ACC_IM + 4, 4)} offset:2064")
        e(f"v_bfe_u32 v{T2}, v{V_LANE}, 2, 2")
        e(f"v_lshl_add_u32 v{T2}, v{T1}, 3, v{T2}")
        e(f"v_lshlrev_b32 v{T2}, 6, v{T2}")
        e(f"v_and_b32 v{T3}, 1, v{V_LANE}")
        e(f"v_lshl_add_u32 v{T2}, v{T3}, 5, v{T2}")
        e(f"v_bfe_u32 v{T3}, v{V_LANE}, 1, 1")
        e(f"v_lshl_add_u32 v{T2}, v{T3}, 3, v{T2}")
        e(f"v_bfe_u32 v{T3}, v{V_LANE}, 4, 1")
        e(f"v_lshl_add_u32 v{T2}, v{T3}, 4, v{T2}")
        e(f"v_add_u32 v{T2}, s{S_T0}, v{T2}")
        e("s_waitcnt lgkmcnt(0)")
        for q in range(4):
            for u in range(2):
                e(f"ds_read_b64_tr_b16 {vr(FR + 4 * q + 2 * u, 2)}, v{T2} offset:{(q >> 1) * 2048 + (q & 1) * 1024 + u * 256}")
        for q in range(4):
            e(f"s_add_u32 s{S_SO}, s{S_A2S}, {q * 2048}")
            e(f"s_waitcnt lgkmcnt({6 - 2 * q})")
            e(f"buffer_store_dwordx4 {vr(FR + 4 * q, 4)}, v{V_ST}, {sr(SWS, 4)}, s{S_SO} offen {CFG['st_flag']}")

    hooks0 = {
        ("post", 4): lambda: e.q(*side_jobs()),
        ("pre", 8): lambda: e.flush(),
        ("step", 33): lambda: e.q(*ssm_p1()),
        ("pre", 9): lambda: e.flush(),
        ("post", 9): lambda: e.q(*ssm_p2()),
        ("pre", 11): lambda: e.flush(),
    }
    main_loop(0, reads0, mfmas0, hooks0, CFG["fillA0"], CFG["fillB0"])
    e.flush()
    stamp(e, 2, f"s{S_W}", T0, T1, SWS)
    e("s_nop 7")
    e("s_nop 3")
    for it in (glu_epilogue(ACC_B0, 3), glu_epilogue(ACC_B1, 4)):
        e.q(*it)
    e.flush()
    stamp(e, 3, f"s{S_W}", T0, T1, SWS)
    ssm_p3()
    stamp(e, 4, f"s{S_W}", T0, T1, SWS)
    e("s_endpgm")

    e.label("K1_ROLE1")
    e.vm = list(pro_vm)
    e.lg = []
    ACC_A = [24, 40, 56]
    ACC_B = [72, 88]
    FR1 = 104
    common_addr()
    stamp(e, 0, f"s{S_W}", 124, 125, SWS)
    stamp(e, 5, f"s{S_W}", 126, 127, SWS, src="s68")
    e(f"v_mul_u32_u24 v{V_WA}, 6272, v{T1}")
    e(f"v_mul_u32_u24 v{T0}, 96, v{T0}")
    e(f"v_add3_u32 v{V_WA}, v{V_WA}, v{T0}, v{T3}")
    e(f"v_add_u32 v{V_WA}, 24576, v{V_WA}")

    def reads1(n):
        st = steps[n]
        C = chunk_of(st)
        if st[2] == 0:
            toggle(C, [V_XA + i for i in range(4)] + [V_WA], [V_WB, V_WB + 1])
        lo = (C % 2) * SLOT
        fb = FR1 + 12 * (n % 2)
        s = st[2]
        if st[0] == "A":
            e.ds(f"ds_read_b128 {ar(4 * n, 4)}, v{V_XA + s} offset:{lo}", ("rd", n))
            for j in range(3):
                for u in range(2):
                    e.ds(f"ds_read_b64_tr_b16 {vr(fb + 4 * j + 2 * u, 2)}, v{V_WA} offset:{lo + (16 * s + 4 * u) * 96 + 32 * j}", ("rd", n))
        else:
            for j in range(2):
                for u in range(2):
                    e.ds(f"ds_read_b64_tr_b16 {vr(fb + 4 * j + 2 * u, 2)}, v{V_WB + j} offset:{lo + (16 * s + 4 * u) * 128}", ("rd", n))

    def mfmas1(n, nf):
        st = steps[n]
        fb = FR1 + 12 * (n % 2)
        if st[0] == "A":
            for j, acc in enumerate(ACC_A):
                mf(acc, vr(fb + 4 * j, 4), ar(4 * n, 4), n == 0)
                e.fill(nf)
        else:
            k = n - 32
            for j, acc in enumerate(ACC_B):
                mf(acc, vr(fb + 4 * j, 4), ar(4 * k, 4), k == 0)
                e.fill(nf)

    T0s, T1s = 18, 19
    hooks1 = {
        ("step", 33): lambda: [e.q(*glu_epilogue(ACC_A[j], j)) for j in range(3)],
    }
    saveT = (T0, T1)
    main_loop1_T = None

    def main_loop_r1():
        e.wait_vm(("dma", 0))
        e("s_barrier")
        stamp(e, 1, f"s{S_W}", T0s, T1s, SWS)
        reads1(0)
        for n, st in enumerate(steps):
            nxt = steps[n + 1] if n + 1 < len(steps) else None
            if nxt is not None:
                C = chunk_of(nxt)
                if nxt[2] == 0:
                    e.wait_lg_all()
                    e.wait_vm(("dma", C))
                    e("s_barrier")
                    stamp(e, 8 + C, f"s{S_W}", T0s, T1s, SWS)
                    if C + 3 <= 11:
                        e.fill_q[0:0] = dma_list(C + 3, 1)
                reads1(n + 1)
            e.wait_lg(("rd", n))
            mfmas1(n, CFG["fillA1"] if st[0] == "A" else CFG["fillB1"])
            if ("step", n) in hooks1:
                hooks1[("step", n)]()
    main_loop_r1()
    e.flush()
    stamp(e, 2, f"s{S_W}", T0s, T1s, SWS)
    e("s_nop 7")
    e("s_nop 3")
    for j in range(2):
        e.q(*glu_epilogue(ACC_B[j], 5 + j))
    e.flush()
    stamp(e, 3, f"s{S_W}", T0s, T1s, SWS)
    e.label("K1_END")
    e("s_endpgm")
    return e.text()


K2_LDS = 5 * 16384


def gen_k2():
    e = Asm()
    R = CFG["ring"]
    NS = 44
    e.raw(".globl k2_kernel\n.p2align 8\n.type k2_kernel,@function\nk2_kernel:")
    e("s_cmp_ge_u32 s2, 256")
    e("s_cbranch_scc1 K2_END")
    e("s_load_dwordx2 s[8:9], s[0:1], 0")
    e("s_load_dwordx2 s[10:11], s[0:1], 64")
    e("s_load_dwordx2 s[12:13], s[0:1], 112")
    e("s_load_dwordx2 s[14:15], s[0:1], 128")
    if CFG["stamp"]:
        e("s_memtime s[46:47]")
    S_MP, S_NP, S_WV = 5, 6, 7
    SA, SW, SG, SXX, SD, SO = 16, 20, 24, 28, 32, 36
    V_LANE, V_OFF, V_LW = 1, 2, 3
    ACC = 64
    e("v_lshrrev_b32 v4, 6, v0")
    e(f"v_and_b32 v{V_LANE}, 63, v0")
    e("s_and_b32 s3, s2, 7")
    e(f"v_readfirstlane_b32 s{S_WV}, v4")
    e("s_lshr_b32 s4, s2, 3")
    e(f"s_lshr_b32 s{S_MP}, s3, 1")
    e(f"s_lshl_b32 s{S_MP}, s{S_MP}, 3")
    e("s_lshr_b32 s40, s4, 2")
    e(f"s_add_u32 s{S_MP}, s{S_MP}, s40")
    e(f"s_and_b32 s{S_NP}, s3, 1")
    e(f"s_lshl_b32 s{S_NP}, s{S_NP}, 2")
    e("s_and_b32 s40, s4, 3")
    e(f"s_add_u32 s{S_NP}, s{S_NP}, s40")
    e(f"v_lshlrev_b32 v{V_OFF}, 4, v{V_LANE}")
    e(f"s_mul_i32 s40, s{S_MP}, {KS * 2048}")
    e(f"s_mul_i32 s41, s{S_WV}, {NS * 2048}")
    e("s_add_u32 s40, s40, s41")
    e(f"s_mul_i32 s42, s{S_NP}, {KS * 2048}")
    e("s_add_u32 s42, s42, s41")
    e(f"s_add_u32 s42, s42, {W2_OFF:#x}")
    e("s_waitcnt lgkmcnt(0)")
    e(f"s_add_u32 s{SA}, s14, s40")
    e(f"s_addc_u32 s{SA + 1}, s15, 0")
    e(f"s_mov_b32 s{SA + 2}, {NS * 2048:#x}")
    e(f"s_mov_b32 s{SA + 3}, 0x00020000")
    e(f"s_add_u32 s{SW}, s14, s42")
    e(f"s_addc_u32 s{SW + 1}, s15, 0")
    e(f"s_mov_b32 s{SW + 2}, {NS * 2048:#x}")
    e(f"s_mov_b32 s{SW + 3}, 0x00020000")

    def loads(i):
        b = 16 * (i % R)
        if i % 2 == 0:
            e(f"s_mov_b32 s43, {i * 2048}")
        o = (i % 2) * 2048
        e.vmem(f"buffer_load_dwordx4 {ar(b, 4)}, v{V_OFF}, {sr(SA, 4)}, s43 offen offset:{o}", ("l", i))
        e.vmem(f"buffer_load_dwordx4 {ar(b + 8, 4)}, v{V_OFF}, {sr(SW, 4)}, s43 offen offset:{o}", ("l", i))
        e.vmem(f"buffer_load_dwordx4 {ar(b + 4, 4)}, v{V_OFF}, {sr(SA, 4)}, s43 offen offset:{o + 1024}", ("l", i))
        e.vmem(f"buffer_load_dwordx4 {ar(b + 12, 4)}, v{V_OFF}, {sr(SW, 4)}, s43 offen offset:{o + 1024}", ("l", i))

    for i in range(R):
        loads(i)
    srd(e, SG, 14, WS_BYTES)
    srd(e, SXX, 8, 2048 * 1024)
    srd(e, SD, 10, 1024)
    srd(e, SO, 12, 2048 * 2048)
    V_T, V_GO, V_XO, V_DO, V_OO = 5, 6, 7, 8, 9
    V_G = 10
    V_X = 12
    V_D = 20
    TA, TB = 28, 29
    e(f"v_bfe_u32 v{TA}, v{V_LANE}, 2, 1")
    e(f"v_lshlrev_b32 v{V_T}, 4, v{TA}")
    e(f"v_bfe_u32 v{TA}, v{V_LANE}, 3, 2")
    e(f"v_lshl_add_u32 v{V_T}, v{TA}, 2, v{V_T}")
    e(f"v_and_b32 v{TA}, 3, v{V_LANE}")
    e(f"v_add_u32 v{V_T}, v{V_T}, v{TA}")
    e(f"s_lshl_b32 s40, s{S_MP}, 6")
    e(f"s_lshr_b32 s41, s{S_WV}, 1")
    e("s_lshl_b32 s41, s41, 5")
    e("s_add_u32 s40, s40, s41")
    e(f"v_add_u32 v{V_T}, s40, v{V_T}")
    e(f"s_lshl_b32 s40, s{S_NP}, 6")
    e(f"s_and_b32 s41, s{S_WV}, 1")
    e("s_lshl_b32 s41, s41, 5")
    e("s_add_u32 s40, s40, s41")
    e(f"v_lshrrev_b32 v{TA}, 5, v{V_LANE}")
    e(f"v_lshlrev_b32 v{TA}, 2, v{TA}")
    e(f"v_add_u32 v{TA}, s40, v{TA}")
    e(f"v_lshlrev_b32 v{V_GO}, 3, v{V_T}")
    e(f"v_lshlrev_b32 v{V_DO}, 1, v{TA}")
    e(f"v_lshl_add_u32 v{V_XO}, v{V_T}, 10, v{V_DO}")
    e(f"v_lshlrev_b32 v{V_OO}, 1, v{V_XO}")
    e(f"s_mov_b32 s44, {G_OFF:#x}")
    e(f"s_add_u32 s40, s{S_WV}, 1")
    e(f"s_cmp_eq_u32 s{S_WV}, 0")
    e("s_cselect_b32 s40, 0, s40")
    e("s_lshl_b32 s40, s40, 14")
    e(f"v_add_u32 v{V_LW}, s40, v{V_OFF}")
    V_LR = 4
    e(f"s_lshl_b32 s40, s{S_WV}, 12")
    e(f"v_add_u32 v{V_LR}, s40, v{V_OFF}")

    K2S = STAMP_OFF + (1 << 19)
    stamp(e, 0, f"s{S_WV}", 30, 31, SG, st=45, src="s46", base=K2S)
    stamp(e, 1, f"s{S_WV}", 30, 31, SG, st=45, base=K2S)

    def ep_loads():
        e.vmem(f"buffer_load_dwordx2 {vr(V_G, 2)}, v{V_GO}, {sr(SG, 4)}, s44 offen", "ep")
        for a in range(4):
            e.vmem(f"buffer_load_dwordx2 {vr(V_X + 2 * a, 2)}, v{V_XO}, {sr(SXX, 4)}, 0 offen offset:{16 * a}", "ep")
            e.vmem(f"buffer_load_dwordx2 {vr(V_D + 2 * a, 2)}, v{V_DO}, {sr(SD, 4)}, 0 offen offset:{16 * a}", "ep")

    XD = 32
    def ep_pre():
        it = [lambda: e.wait_vm("ep")]
        for d in range(8):
            o = XD + 2 * d
            it += [f"v_lshlrev_b32 v{o}, 16, v{V_X + d}",
                   f"v_and_b32 v{o + 1}, 0xffff0000, v{V_X + d}",
                   f"v_lshlrev_b32 v{TA}, 16, v{V_D + d}",
                   f"v_and_b32 v{TB}, 0xffff0000, v{V_D + d}",
                   f"v_mul_f32 v{o}, v{o}, v{TA}",
                   f"v_mul_f32 v{o + 1}, v{o + 1}, v{TB}",
                   f"v_cvt_pk_bf16_f32 v{o}, v{o}, v{o + 1}",
                   f"v_and_b32 v{o + 1}, 0xffff0000, v{o}",
                   f"v_lshlrev_b32 v{o}, 16, v{o}"]
        return it

    def write_partial(addr, off0):
        for qd in range(4):
            for g4 in range(4):
                e.ds(f"ds_write_b128 v{addr}, {vr(ACC + 16 * qd + 4 * g4, 4)} offset:{off0 + qd * 4096 + g4 * 1024}", "pw")

    for i in range(NS):
        b = 16 * (i % R)
        e.wait_vm(("l", i))
        for tt in range(2):
            for nt in range(2):
                acc = ACC + 16 * (2 * tt + nt)
                c = "0" if i == 0 else vr(acc, 16)
                e(f"v_mfma_f32_32x32x16_bf16 {vr(acc, 16)}, {ar(b + 8 + 4 * nt, 4)}, {ar(b + 4 * tt, 4)}, {c}")
                e.fill(3)
        if i in (0, 10, 20, 30, 43):
            stamp(e, 2 + i // 10, f"s{S_WV}", 30, 31, SG, st=45, base=K2S)
        if i + R < NS:
            loads(i + R)
        if i + R == NS:
            ep_loads()
        if i == NS - 6:
            e.q(*ep_pre())
        if i == 19:
            e(f"s_cmp_eq_u32 s{S_WV}, 1")
            e("s_cbranch_scc0 K2_NOFLUSH")
            e("s_nop 7")
            e("s_nop 3")
            write_partial(V_OFF, 16384)
            e("s_waitcnt lgkmcnt(0)")
            e.lg = []
            for r_ in range(64):
                e(f"v_mov_b32 v{ACC + r_}, 0")
            e("s_nop 0")
            e.label("K2_NOFLUSH")
    e.flush()
    e("s_nop 7")
    e("s_nop 3")
    write_partial(V_LW, 0)
    e.wait_lg_all()
    e("s_barrier")
    stamp(e, 7, f"s{S_WV}", 30, 31, SG, st=45, base=K2S)
    PR = [ACC, ACC + 16, ACC + 32, ACC + 48, 48]
    for g4 in range(4):
        for s in range(5):
            if s * 16384 + g4 * 1024 > 65535:
                continue
            e.ds(f"ds_read_b128 {vr(PR[s] + 4 * g4, 4)}, v{V_LR} offset:{s * 16384 + g4 * 1024}", ("pr", g4))
        if g4 == 0:
            e(f"v_add_u32 v{TA}, 65536, v{V_LR}")
        e.ds(f"ds_read_b128 {vr(PR[4] + 4 * g4, 4)}, v{TA} offset:{g4 * 1024}", ("pr", g4))
        if g4 == 1:
            pass
    for g4 in range(4):
        if g4 == 0:
            pass
        n_after = 5 * (3 - g4)
        e(f"s_waitcnt lgkmcnt({min(n_after, 15)})")
        for b in range(4):
            i = 4 * g4 + b
            e(f"v_add_f32 v{PR[0] + i}, v{PR[0] + i}, v{PR[1] + i}")
            e(f"v_add_f32 v{PR[2] + i}, v{PR[2] + i}, v{PR[3] + i}")
        for b in range(4):
            i = 4 * g4 + b
            e(f"v_add_f32 v{PR[0] + i}, v{PR[0] + i}, v{XD + i}")
            e(f"v_add_f32 v{PR[2] + i}, v{PR[2] + i}, v{PR[4] + i}")
        for b in range(4):
            i = 4 * g4 + b
            e(f"v_mul_f32 v{PR[0] + i}, v{PR[0] + i}, v{V_G}")
        for b in range(4):
            i = 4 * g4 + b
            e(f"v_fmac_f32 v{PR[0] + i}, v{PR[2] + i}, v{V_G + 1}")
        e(f"buffer_store_dwordx4 {vr(PR[0] + 4 * g4, 4)}, v{V_OO}, {sr(SO, 4)}, 0 offen offset:{32 * g4}")
    stamp(e, 8, f"s{S_WV}", 30, 31, SG, st=45, base=K2S)
    e.label("K2_END")
    e("s_endpgm")
    return e.text()


def kd(name, nv, acc, ns=102):
    return f""".p2align 6
.amdhsa_kernel {name}
  .amdhsa_next_free_vgpr {nv}
  .amdhsa_next_free_sgpr {ns}
  .amdhsa_accum_offset {acc}
  .amdhsa_group_segment_fixed_size 0
  .amdhsa_kernarg_size 136
  .amdhsa_user_sgpr_count 2
  .amdhsa_user_sgpr_kernarg_segment_ptr 1
  .amdhsa_system_sgpr_workgroup_id_x 1
.end_amdhsa_kernel"""


out = [hdr.rstrip(),
       f"; @launch kernel=k1_kernel grid=(256,1,1) block=(512,1,1) lds={K1_LDS}",
       f"; @launch kernel=k2_kernel grid=(256,1,1) block=(256,1,1) lds={K2_LDS}",
       '.amdgcn_target "amdgcn-amd-amdhsa--gfx950"',
       ".text",
       gen_k1(), gen_k2(),
       '.section .rodata,"a"',
       kd("k1_kernel", 256, 128),
       kd("k2_kernel", 128 + 16 * CFG["ring"], 128, 48)]
print("\n".join(out))
```

```python
class Asm:
    def __init__(self):
        self.lines = []
        self.vm = []
        self.lg = []
        self.fill_q = []
        self.nins = 0

    def __call__(self, s):
        self.lines.append("    " + s)
        self.nins += 1

    def label(self, s):
        self.lines.append(s + ":")

    def comment(self, s):
        self.lines.append("    ; " + s)

    def raw(self, s):
        self.lines.append(s)

    def vmem(self, s, tag):
        self(s)
        self.vm.append(tag)

    def ds(self, s, tag):
        self(s)
        self.lg.append(tag)

    def wait_vm(self, tag, force=False):
        idx = max((i for i, t in enumerate(self.vm) if t == tag), default=None)
        if idx is None:
            return
        n = len(self.vm) - 1 - idx
        n = min(n, 63)
        self(f"s_waitcnt vmcnt({n})")
        self.vm = self.vm[idx + 1:]

    def wait_lg(self, tag):
        idx = max((i for i, t in enumerate(self.lg) if t == tag), default=None)
        if idx is None:
            return
        n = len(self.lg) - 1 - idx
        n = min(n, 15)
        self(f"s_waitcnt lgkmcnt({n})")
        self.lg = self.lg[idx + 1:]

    def wait_lg_all(self):
        if self.lg:
            self("s_waitcnt lgkmcnt(0)")
            self.lg = []

    def wait_vm_all(self):
        self("s_waitcnt vmcnt(0)")
        self.vm = []

    nofill = False

    def q(self, *items):
        if self.nofill:
            items = [i for i in items if callable(i)]
        self.fill_q.extend(items)

    def fill(self, n):
        for _ in range(n):
            if not self.fill_q:
                return
            it = self.fill_q.pop(0)
            if callable(it):
                it()
            else:
                self(it)

    def flush(self):
        while self.fill_q:
            self.fill(1)

    def text(self):
        return "\n".join(self.lines)


def vr(b, n=1):
    return f"v{b}" if n == 1 else f"v[{b}:{b + n - 1}]"


def ar(b, n=1):
    return f"a{b}" if n == 1 else f"a[{b}:{b + n - 1}]"


def sr(b, n=1):
    return f"s{b}" if n == 1 else f"s[{b}:{b + n - 1}]"
```

```python
import sys
from asmlib import Asm, vr, ar, sr

CFG = dict(
    fillA0=3, fillA1=2, fillB0=6, fillB1=4,
    ring=8,
    st_flag="",
    stamp=0,
    pfl=2, ahead=2, prio=1, pro=2, pf=1, pf2=1, pfg=2, pfs=2, pfo=1,
    xbar1=35,
    tstep=56,
    x_nofill=0, x_nomfma=0, x_nodma=0, x_nobar=0, x_noread=0, x_flood=0,
)
for a in sys.argv[1:]:
    k, v = a.split("=")
    CFG[k] = type(CFG[k])(v)

KS = 176
W2_OFF = 12 << 20
G_OFF = 16 << 20
T_OFF = 17 << 20
STAMP_OFF = 18 << 20
WS_BYTES = 20 << 20

SLOT = 40960
PAIR = 2 * SLOT
K1_LDS = 4 * SLOT
WAU = 12288 + 128
TR_BUF = 24832
WD_STAGE = TR_BUF + 4096
E_AREA = 32768

LOG2E = 0x3FB8AA3B
NLOG2E = 0xBFB8AA3B
OOB = "0x7ffffff0"

hdr = open("gated_mix__ssm_conv_s5__glu_gated_glu__prompt.s.ref").read().split("; Override")[0]

P_X, P_LRE, P_LIM, P_BRE, P_BIM, P_CRE, P_CIM, P_LDT = 8, 10, 12, 14, 16, 18, 20, 22
P_DSK, P_BX, P_WG, P_WU, P_WD, P_GW, P_OUT, P_DBG, P_WS = 24, 26, 28, 30, 32, 34, 36, 38, 40
S_RB, S_CB, S_W = 5, 6, 7
S_RW, S_CW = 42, 43
SX, SBM, SWG, SWU, SWA2, SWS, ST, SDBG, ST1, ST2, SPF, ST4 = 44, 48, 52, 56, 60, 64, 68, 72, 76, 80, 84, 88
ST3 = ST4
S_SO, S_NL2E, S_A2S, S_A2G, S_MX, S_MBM, S_MWA, S_T0, S_T1, S_T2 = 92, 93, 94, 95, 96, 97, 98, 99, 100, 101
S_NB, S_CBQ = 3, 4
S_PFS, S_SO2, S_SLT, S_GROW, S_JT1, S_W2B = 26, 27, 36, 37, 24, 25


def srd(e, d, p, nbytes):
    e(f"s_mov_b32 s{d}, s{p}")
    e(f"s_mov_b32 s{d + 1}, s{p + 1}")
    e(f"s_mov_b32 s{d + 2}, {nbytes:#x}")
    e(f"s_mov_b32 s{d + 3}, 0x00020000")


def srd_sel(e, d, pa, pb, nbytes):
    e(f"s_cselect_b32 s{d}, s{pa}, s{pb}")
    e(f"s_cselect_b32 s{d + 1}, s{pa + 1}, s{pb + 1}")
    e(f"s_mov_b32 s{d + 2}, {nbytes:#x}")
    e(f"s_mov_b32 s{d + 3}, 0x00020000")


def stamp(e, idx, wave_s, tmpv0, srdreg, st=None, src=None, base=STAMP_OFF):
    if not CFG["stamp"]:
        return
    if CFG["stamp"] == 2 and base == STAMP_OFF and idx not in (5, 1, 12, 16, 6, 2, 3, 4):
        return
    st = S_T0 if st is None else st
    if src is None:
        e("s_memtime s[0:1]")
        e("s_waitcnt lgkmcnt(0)")
        e.lg = []
        src = "s0"
    e(f"s_lshl_b32 s{st}, s2, 3")
    e(f"s_add_u32 s{st}, s{st}, {wave_s}")
    e(f"s_lshl_b32 s{st}, s{st}, 7")
    e(f"s_add_u32 s{st}, s{st}, {base + idx * 4:#x}")
    e(f"v_mov_b32 v{tmpv0}, {src}")
    e.vmem(f"buffer_store_dword v{tmpv0}, off, {sr(srdreg, 4)}, s{st}", "stamp")


def block(e, lines):
    def f():
        for l in lines:
            if callable(l):
                l()
            else:
                e(l)
    return f


def gen_k1():
    e = Asm()
    e.nofill = bool(CFG["x_nofill"])
    e.raw(".globl k1_kernel\n.p2align 8\n.type k1_kernel,@function\nk1_kernel:")
    e("s_cmp_ge_u32 s2, 256")
    e("s_cbranch_scc1 K1_END")
    e("s_load_dwordx16 s[8:23], s[0:1], 0")
    e("s_load_dwordx16 s[24:39], s[0:1], 64")
    e("s_load_dwordx2 s[40:41], s[0:1], 128")
    if CFG["stamp"]:
        e("s_memtime s[68:69]")
    V_DUM, V_LANE, V_PFA, V_PFB = 0, 1, 2, 3
    V_DX0, V_DX1, V_DBM, V_DWBG, V_DWBU = 4, 5, 6, 7, 8
    V_DWA = 4
    V_SV = 0
    V_XA = 10
    V_ST = 14
    V_WA = 16
    V_WB = 17
    V_BA = 18
    V_EA, V_WDA = 22, 23
    T0, T1, T2, T3 = 116, 117, 118, 119
    V_I, V_POS = 120, 121
    X, J = S_T1, S_T2
    S_RBL, S_CBL = S_A2S, S_A2G
    e(f"v_lshrrev_b32 v{T0}, 6, v0")
    e(f"v_and_b32 v{V_LANE}, 63, v0")
    e(f"s_and_b32 s{X}, s2, 7")
    e(f"v_readfirstlane_b32 s{S_W}, v{T0}")
    e(f"s_lshr_b32 s{J}, s2, 3")
    e(f"s_lshr_b32 s{S_RB}, s{X}, 2")
    e(f"s_lshl_b32 s{S_RB}, s{S_RB}, 3")
    e(f"s_lshr_b32 s{S_RBL}, s{J}, 2")
    e(f"s_add_u32 s{S_RB}, s{S_RB}, s{S_RBL}")
    e(f"s_and_b32 s{S_CB}, s{X}, 3")
    e(f"s_lshl_b32 s{S_CB}, s{S_CB}, 2")
    e(f"s_and_b32 s{S_CBL}, s{J}, 3")
    e(f"s_add_u32 s{S_CB}, s{S_CB}, s{S_CBL}")
    e(f"s_bfe_u32 s{S_NB}, s{X}, 0x10001")
    e(f"s_lshr_b32 s{S_CBQ}, s{X}, 2")
    e(f"s_lshl_b32 s{S_CBQ}, s{S_CBQ}, 1")
    e(f"s_and_b32 s{S_T0}, s{X}, 1")
    e(f"s_add_u32 s{S_CBQ}, s{S_CBQ}, s{S_T0}")
    e(f"s_lshl_b32 s{S_NB}, s{S_NB}, 3")
    e(f"s_and_b32 s{S_T0}, s{J}, 7")
    e(f"s_add_u32 s{S_NB}, s{S_NB}, s{S_T0}")
    e(f"s_lshl_b32 s{S_CBQ}, s{S_CBQ}, 2")
    e(f"s_lshr_b32 s{S_T0}, s{J}, 3")
    e(f"s_add_u32 s{S_CBQ}, s{S_CBQ}, s{S_T0}")
    e(f"s_and_b32 s{S_RW}, s{S_W}, 3")
    e(f"s_lshr_b32 s{S_CW}, s{S_W}, 2")
    e(f"v_lshrrev_b32 v{V_I}, 3, v{V_LANE}")
    e(f"v_and_b32 v{V_POS}, 7, v{V_LANE}")
    e(f"s_lshl_b32 s{S_T0}, s{S_RB}, 17")
    e(f"s_lshr_b32 s{S_T1}, s{S_W}, 1")
    e(f"s_lshl_b32 s{S_T1}, s{S_T1}, 15")
    e(f"s_add_u32 s{S_T0}, s{S_T0}, s{S_T1}")
    e(f"s_and_b32 s{S_T1}, s{S_W}, 1")
    e(f"s_lshl_b32 s{S_T2}, s{S_T1}, 13")
    e(f"s_add_u32 s{S_T0}, s{S_T0}, s{S_T2}")
    e(f"v_lshrrev_b32 v{T0}, 1, v{V_I}")
    e(f"v_xor_b32 v{T1}, v{V_POS}, v{T0}")
    e(f"v_lshlrev_b32 v{T1}, 4, v{T1}")
    e(f"v_lshrrev_b32 v{T2}, 2, v{V_I}")
    e(f"v_lshlrev_b32 v{T2}, 14, v{T2}")
    e(f"v_and_b32 v{T3}, 3, v{V_I}")
    e(f"v_lshl_add_u32 v{T2}, v{T3}, 10, v{T2}")
    e(f"v_add3_u32 v{V_DX0}, v{T2}, v{T1}, s{S_T0}")
    e(f"v_xor_b32 v{V_DX1}, 64, v{V_DX0}")
    e(f"v_add_u32 v{V_DX1}, 0x1000, v{V_DX1}")
    e(f"s_lshl_b32 s{S_T2}, s{S_T1}, 6")
    e(f"v_xor_b32 v{T1}, s{S_T2}, v{T1}")
    e(f"s_lshl_b32 s{S_T0}, s{S_CB}, 15")
    e(f"s_lshl_b32 s{S_T2}, s{S_RW}, 13")
    e(f"s_add_u32 s{S_T0}, s{S_T0}, s{S_T2}")
    e(f"v_lshl_add_u32 v{V_DBM}, v{V_I}, 10, v{T1}")
    e(f"v_add_u32 v{V_DBM}, s{S_T0}, v{V_DBM}")
    e(f"v_lshrrev_b32 v{T0}, 1, v{V_POS}")
    e(f"v_bfe_u32 v{T1}, v{V_I}, 1, 1")
    e(f"v_xor_b32 v{T0}, v{T0}, v{T1}")
    e(f"v_lshlrev_b32 v{T0}, 5, v{T0}")
    e(f"v_and_b32 v{T1}, 1, v{V_POS}")
    e(f"v_lshl_add_u32 v{T0}, v{T1}, 4, v{T0}")
    e(f"v_mul_u32_u24 v{T1}, 3584, v{V_I}")
    e(f"s_mul_i32 s{S_T0}, s{S_W}, {8 * 3584}")
    e(f"s_lshl_b32 s{S_T1}, s{S_CB}, 7")
    e(f"s_add_u32 s{S_T0}, s{S_T0}, s{S_T1}")
    e(f"v_add3_u32 v{V_DWBG}, v{T0}, v{T1}, s{S_T0}")
    e(f"v_xor_b32 v{V_DWBU}, 64, v{V_DWBG}")
    e(f"s_lshl_b32 s{S_MX}, s{S_W}, 11")
    e(f"s_lshl_b32 s{S_MBM}, s{S_W}, 10")
    for d, nb in ((SX, 2048 * 1024), (SBM, 512 * 1024), (SWG, 512 * 3584), (SWU, 512 * 3584)):
        e(f"s_mov_b32 s{d + 2}, {nb:#x}")
        e(f"s_mov_b32 s{d + 3}, 0x00020000")
    e("s_waitcnt lgkmcnt(0)")
    PFW = 7
    V_PFS = 15
    pf_uid = [0]

    def pf_item(C):
        def f():
            if not CFG["pf"]:
                return
            pf_uid[0] += 1
            lab = f"K1_PF{pf_uid[0]}"
            e(f"s_cmp_eq_u32 s{S_W}, {PFW}")
            e(f"s_cbranch_scc0 {lab}")
            if C == 8:
                pf_setup_b()
            e(f"global_load_dword v{V_DUM}, {vr(V_PFA, 2)}, off")
            e(f"v_add_co_u32 v{V_PFA}, vcc, v{V_PFS}, v{V_PFA}")
            e("s_nop 1")
            e(f"v_addc_co_u32 v{V_PFA + 1}, vcc, 0, v{V_PFA + 1}, vcc")
            e.label(lab)
        f.is_dma = True
        f.chunk = C - CFG['pfl']
        return f

    def pf_sel(lo_lane, p, tl, th):
        e(f"v_cmp_le_u32 vcc, {lo_lane}, v{V_LANE}")
        e(f"v_mov_b32 v{tl}, s{p}")
        e(f"v_mov_b32 v{th}, s{p + 1}")
        e(f"v_cndmask_b32 v{V_PFA}, v{V_PFA}, v{tl}, vcc")
        e(f"v_cndmask_b32 v{V_PFA + 1}, v{V_PFA + 1}, v{th}, vcc")

    def pf_setup_a(first):
        a, b, c = T0, T1, T2
        e(f"v_mov_b32 v{V_PFA}, s{P_X}")
        e(f"v_mov_b32 v{V_PFA + 1}, s{P_X + 1}")
        pf_sel(32, P_BRE, a, b)
        pf_sel(36, P_BIM, a, b)
        pf_sel(40, P_WG, a, b)
        pf_sel(48, P_WU, a, b)
        e(f"s_lshl_b32 s{S_T0}, s{S_RB}, 7")
        e(f"s_lshl_b32 s{S_T1}, s{S_CBL}, 5")
        e(f"s_add_u32 s{S_T0}, s{S_T0}, s{S_T1}")
        e(f"v_add_u32 v{a}, s{S_T0}, v{V_LANE}")
        e(f"v_lshlrev_b32 v{a}, 10, v{a}")
        e(f"s_lshl_b32 s{S_T0}, s{S_CB}, 5")
        e(f"s_lshl_b32 s{S_T1}, s{S_RBL}, 2")
        e(f"s_add_u32 s{S_T0}, s{S_T0}, s{S_T1}")
        e(f"v_and_b32 v{b}, 3, v{V_LANE}")
        e(f"v_add_u32 v{b}, s{S_T0}, v{b}")
        e(f"v_cmp_le_u32 vcc, 32, v{V_LANE}")
        e(f"v_lshlrev_b32 v{b}, 10, v{b}")
        e(f"s_mul_i32 s{S_T0}, s{S_RBL}, {8 * 3584}")
        e(f"v_cndmask_b32 v{a}, v{a}, v{b}, vcc")
        e(f"s_lshl_b32 s{S_T1}, s{S_CB}, 7")
        e(f"s_add_u32 s{S_T0}, s{S_T0}, s{S_T1}")
        e(f"v_and_b32 v{b}, 7, v{V_LANE}")
        e(f"v_mul_u32_u24 v{b}, 3584, v{b}")
        e(f"v_cmp_le_u32 vcc, 40, v{V_LANE}")
        e(f"v_add_u32 v{b}, s{S_T0}, v{b}")
        e(f"v_mov_b32 v{V_PFS}, 128")
        e(f"v_mov_b32 v{c}, {64 * 3584}")
        e(f"v_cndmask_b32 v{a}, v{a}, v{b}, vcc")
        e(f"v_cndmask_b32 v{V_PFS}, v{V_PFS}, v{c}, vcc")
        e(f"v_mad_u32_u24 v{a}, v{V_PFS}, {first}, v{a}")
        e(f"v_add_co_u32 v{V_PFA}, vcc, v{a}, v{V_PFA}")
        e("s_nop 1")
        e(f"v_addc_co_u32 v{V_PFA + 1}, vcc, 0, v{V_PFA + 1}, vcc")

    def pf_setup_b():
        a, b = 20, 21
        e(f"v_mov_b32 v{V_PFA}, s{P_WG}")
        e(f"v_mov_b32 v{V_PFA + 1}, s{P_WG + 1}")
        pf_sel(32, P_WU, a, b)
        e(f"v_bfe_u32 v{a}, v{V_LANE}, 1, 4")
        e(f"v_mul_u32_u24 v{a}, 3584, v{a}")
        e(f"v_and_b32 v{b}, 1, v{V_LANE}")
        e(f"v_mul_u32_u24 v{b}, 80, v{b}")
        e(f"s_and_b32 s{S_T0}, s{S_RB}, 7")
        e(f"s_mul_i32 s{S_T0}, s{S_T0}, {16 * 3584}")
        e(f"s_mul_i32 s{S_T1}, s{S_CB}, 96")
        e(f"s_add_u32 s{S_T0}, s{S_T0}, s{S_T1}")
        e(f"s_add_u32 s{S_T0}, s{S_T0}, 2048")
        e(f"v_add3_u32 v{a}, v{a}, v{b}, s{S_T0}")
        e(f"v_mov_b32 v{V_PFS}, {128 * 3584}")
        e(f"v_add_co_u32 v{V_PFA}, vcc, v{a}, v{V_PFA}")
        e("s_nop 1")
        e(f"v_addc_co_u32 v{V_PFA + 1}, vcc, 0, v{V_PFA + 1}, vcc")

    e(f"s_mov_b32 s{SX}, s{P_X}")
    e(f"s_mov_b32 s{SX + 1}, s{P_X + 1}")
    e(f"s_cmp_eq_u32 s{S_CW}, 0")
    e(f"s_cselect_b32 s{SBM}, s{P_BRE}, s{P_BIM}")
    e(f"s_cselect_b32 s{SBM + 1}, s{P_BRE + 1}, s{P_BIM + 1}")
    e(f"s_cselect_b32 s{SWA2}, s{P_WG}, s{P_WU}")
    e(f"s_cselect_b32 s{SWA2 + 1}, s{P_WG + 1}, s{P_WU + 1}")
    for d, p in ((SWG, P_WG), (SWU, P_WU)):
        e(f"s_mov_b32 s{d}, s{p}")
        e(f"s_mov_b32 s{d + 1}, s{p + 1}")

    def dma_list(C):
        slot = (C % 4) * SLOT
        out = []

        def mk(mbase, moff, voff, srd_, soff):
            def f():
                e(f"s_add_u32 m0, s{mbase}, {slot + moff}")
                e(f"s_mov_b32 s{S_SO2}, {soff}")
                if CFG["x_nodma"] and C >= 2:
                    return
                e.vmem(f"buffer_load_dwordx4 v{voff}, {sr(srd_, 4)}, s{S_SO2} offen lds", ("dma", C))
            f.is_dma = True
            f.chunk = C
            return f
        if C < 8:
            out.append(mk(S_MX, 0, V_DX0, SX, 128 * C))
            out.append(mk(S_MBM, 24576, V_DWBG, SWG, 64 * 3584 * C))
            out.append(mk(S_MX, 1024, V_DX1, SX, 128 * C))
            out.append(mk(S_MBM, 32768, V_DWBU, SWU, 64 * 3584 * C))
            out.append(mk(S_MBM, 16384, V_DBM, SBM, 128 * C))
        else:
            for m in range(3):
                out.append(mk(S_MWA, 1024 * m, V_DWA + m, SWA2, 128 * 3584 * (C - 8)))
        return out

    for f in dma_list(0):
        f()
    if CFG["pf"]:
        e(f"s_cmp_eq_u32 s{S_W}, {PFW}")
        e("s_cbranch_scc0 K1_PFSKIP")
        pf_setup_a(1)
        e.label("K1_PFSKIP")
        for C in range(1, min(8, CFG["ahead"] + CFG["pfl"] + 1)):
            pf_item(C)()
    for C in range(1, CFG["pro"]):
        e("s_barrier")
        for f in dma_list(C):
            f()

    e(f"s_mov_b32 s{SWA2 + 2}, {512 * 3584:#x}")
    e(f"s_mov_b32 s{SWA2 + 3}, 0x00020000")
    e(f"s_mul_i32 s{S_MWA}, s{S_RW}, 3072")
    e(f"s_mul_i32 s{S_T1}, s{S_CW}, {WAU}")
    e(f"s_add_u32 s{S_MWA}, s{S_MWA}, s{S_T1}")
    e(f"v_and_b32 v{T0}, 31, v{V_LANE}")
    e(f"v_lshrrev_b32 v{T1}, 5, v{V_LANE}")
    e(f"v_bfe_u32 v{T2}, v{V_LANE}, 1, 3")
    e(f"v_xor_b32 v{T2}, v{T2}, v{T1}")
    e(f"v_lshlrev_b32 v{T2}, 4, v{T2}")
    e(f"v_lshl_add_u32 v{T2}, v{T0}, 7, v{T2}")
    e(f"s_lshl_b32 s{S_T0}, s{S_RW}, 12")
    e(f"v_add_u32 v{V_XA}, s{S_T0}, v{T2}")
    for s in range(1, 4):
        e(f"v_xor_b32 v{V_XA + s}, {32 * s}, v{V_XA}")
    e(f"v_lshlrev_b32 v{V_ST}, 4, v{V_LANE}")
    e(f"v_bfe_u32 v{T0}, v{V_LANE}, 2, 2")
    e(f"v_lshl_add_u32 v{T0}, v{T1}, 3, v{T0}")
    e(f"v_bfe_u32 v{T1}, v{V_LANE}, 4, 1")
    e(f"v_and_b32 v{T3}, 3, v{V_LANE}")
    e(f"v_lshlrev_b32 v{T3}, 3, v{T3}")
    e(f"v_lshlrev_b32 v{V_WB}, 13, v{T1}")
    e(f"v_lshl_add_u32 v{V_WB}, v{T0}, 7, v{V_WB}")
    e(f"v_bfe_u32 v{T2}, v{V_LANE}, 3, 2")
    e(f"v_lshl_add_u32 v{V_WB}, v{T2}, 5, v{V_WB}")
    e(f"v_add_u32 v{V_WB}, v{V_WB}, v{T3}")
    e(f"v_add_u32 v{V_WB}, 24576, v{V_WB}")
    e(f"v_mul_u32_u24 v{V_WA}, {WAU}, v{T1}")
    e(f"v_mul_u32_u24 v{T2}, 96, v{T0}")
    e(f"v_add3_u32 v{V_WA}, v{V_WA}, v{T2}, v{T3}")
    srd(e, SWS, P_WS, WS_BYTES)
    e(f"s_mov_b32 s{S_NL2E}, {NLOG2E:#x}")
    e(f"s_lshl_b32 s{S_T0}, s{S_RB}, 1")
    e(f"s_lshr_b32 s{S_T1}, s{S_RW}, 1")
    e(f"s_add_u32 s{S_T0}, s{S_T0}, s{S_T1}")
    e(f"s_mul_i32 s{S_T0}, s{S_T0}, {KS * 2048}")
    e(f"s_and_b32 s{S_T1}, s{S_RW}, 1")
    e(f"s_lshl_b32 s{S_T1}, s{S_T1}, 10")
    e(f"s_add_u32 s{S_T0}, s{S_T0}, s{S_T1}")
    e(f"s_lshl_b32 s{S_T1}, s{S_CB}, 13")
    e(f"s_add_u32 s{S_A2S}, s{S_T0}, s{S_T1}")
    e(f"s_mul_i32 s{S_T1}, s{S_CB}, {7 * 2048}")
    e(f"s_add_u32 s{S_A2G}, s{S_T0}, s{S_T1}")
    e(f"s_add_u32 s{S_A2G}, s{S_A2G}, {64 * 2048}")
    stamp(e, 5, f"s{S_W}", V_SV, SWS, src="s68")
    FLOOD_MARK = len(e.lines)
    e(f"s_cmp_eq_u32 s{S_CW}, 0")
    e("s_cbranch_scc0 K1_ROLE1")
    pro_vm = list(e.vm)

    def wa_voffsets(t0, t1, t2):
        it = [block(e, [f"s_mul_i32 s{S_SLT}, s{S_CB}, 96", f"s_add_u32 s{S_SLT}, s{S_SLT}, 2048",
                        f"s_mul_i32 s{S_T0}, s{S_RW}, {32 * 3584}", f"s_add_u32 s{S_SLT}, s{S_SLT}, s{S_T0}"])]
        for m in range(3):
            it += [f"v_add_u32 v{t0}, {64 * m}, v{V_LANE}",
                   f"v_mul_u32_u24 v{t1}, 43691, v{t0}",
                   f"v_lshrrev_b32 v{t1}, 18, v{t1}",
                   f"v_mul_u32_u24 v{t2}, 6, v{t1}",
                   f"v_sub_u32 v{t2}, v{t0}, v{t2}",
                   f"v_mul_u32_u24 v{t1}, 3584, v{t1}",
                   f"v_lshl_add_u32 v{t1}, v{t2}, 4, v{t1}",
                   f"v_add_u32 v{V_DWA + m}, s{S_SLT}, v{t1}"]
        return [(lambda l=l: e(l)) if isinstance(l, str) else l for l in it]

    if CFG["x_flood"]:
        tail_lines = e.lines[FLOOD_MARK:]
        del e.lines[FLOOD_MARK:]
        for C in range(CFG["pro"], 8):
            if CFG["x_flood"] == 2 and C + CFG["pfl"] < 8 and C + CFG["pfl"] > CFG["ahead"] + CFG["pfl"]:
                pf_item(C + CFG["pfl"])()
            for f in dma_list(C):
                f()
            if C % 2 == 1:
                e("s_waitcnt vmcnt(10)")
                stamp(e, 8 + C - 2, f"s{S_W}", V_SV, SWS)
        for f in wa_voffsets(20, 21, 22):
            f()
        for C in range(8, 12):
            for f in dma_list(C):
                f()
        e("s_waitcnt vmcnt(12)")
        stamp(e, 16, f"s{S_W}", V_SV, SWS)
        e("s_waitcnt vmcnt(0)")
        stamp(e, 2, f"s{S_W}", V_SV, SWS)
        e("s_barrier")
        stamp(e, 3, f"s{S_W}", V_SV, SWS)
        e("s_endpgm")
        e.lines.extend(tail_lines)

    def glu_epilogue(acc, jt):
        it = []
        for i in range(8):
            it.append(f"v_mul_f32 v{acc + i}, s{S_NL2E}, v{acc + i}")
        for i in range(8):
            it.append(f"v_exp_f32 v{acc + i}, v{acc + i}")
        for i in range(8):
            it.append(f"v_add_f32 v{acc + i}, 1.0, v{acc + i}")
        for i in range(8):
            it.append(f"v_rcp_f32 v{acc + i}, v{acc + i}")
        for i in range(8):
            it.append(f"v_mul_f32 v{acc + i}, v{acc + i}, v{acc + 8 + i}")
        for i in range(4):
            it.append(f"v_cvt_pk_bf16_f32 v{acc + 8 + i}, v{acc + 2 * i}, v{acc + 2 * i + 1}")
        it.append(block(e, [f"s_add_u32 s{S_SO}, s{S_A2G}, {jt * 2048}", lambda: e.vmem(
            f"buffer_store_dwordx4 {vr(acc + 8, 4)}, v{V_ST}, {sr(SWS, 4)}, s{S_SO} offen {CFG['st_flag']}", "st")]))
        return it

    steps = [("A", c, s) for c in range(8) for s in range(4)] + [("B", c, s) for c in range(4) for s in range(8)]

    def qdma(items):
        i = 0
        while i < len(e.fill_q) and getattr(e.fill_q[i], "is_dma", False):
            i += 1
        e.fill_q[i:i] = items

    def flush_dma(C):
        while any(getattr(f, "is_dma", False) and f.chunk <= C for f in e.fill_q):
            e.fill(1)

    def chunk_of(st):
        return st[1] if st[0] == "A" else 8 + st[1]

    def main_loop(role, hooks, nfillA, nfillB, wt):
        AH = CFG["ahead"]
        e.wait_vm(("dma", 0))
        e("s_barrier")
        stamp(e, 1, f"s{S_W}", V_SV, SWS)
        for C in range(CFG["pro"], AH + 1):
            e.fill_q.extend(dma_list(C))
        for n2 in (0, 1):
            for rd in role.reads(n2):
                rd()
        for n, st in enumerate(steps):
            n2 = n + 2
            rds = []
            if n2 < len(steps):
                C = chunk_of(steps[n2])
                if steps[n2][2] == 0:
                    if ("pre", C) in hooks:
                        hooks[("pre", C)]()
                    flush_dma(C)
                    if AH == 3:
                        e.wait_lg_all()
                    e.wait_vm(("dma", C))
                    if not CFG["x_nobar"]:
                        e("s_barrier")
                    stamp(e, 8 + C, f"s{S_W}", V_SV, SWS)
                    items = []
                    if C + AH == 8:
                        flush_dma(7)
                        w = wa_voffsets(*wt)
                        for f in w:
                            f.is_dma = True
                            f.chunk = 8
                        items += w
                    if C + AH <= 11:
                        items += dma_list(C + AH)
                    if role.pf and C + AH + CFG["pfl"] <= 11:
                        items.append(pf_item(C + AH + CFG["pfl"]))
                    qdma(items)
                    if ("post", C) in hooks:
                        hooks[("post", C)]()
                rds = role.reads(n2)
            mfs = role.mfmas(n)
            e.wait_lg(("rd", n))
            nf = nfillA if st[0] == "A" else nfillB
            for g, m in enumerate(mfs):
                m()
                lo = g * len(rds) // len(mfs)
                hi = (g + 1) * len(rds) // len(mfs)
                for rd in rds[lo:hi]:
                    if not CFG["x_noread"]:
                        rd()
                e.fill(nf)
            if ("step", n) in hooks:
                hooks[("step", n)]()

    def toggle(C, regsA, regsB):
        if C in (2, 6):
            for r_ in regsA:
                e(f"v_add_u32 v{r_}, {PAIR}, v{r_}")
        elif C == 4:
            for r_ in regsA:
                e(f"v_subrev_u32 v{r_}, {PAIR}, v{r_}")
        elif C == 10:
            for r_ in regsB:
                e(f"v_add_u32 v{r_}, {PAIR}, v{r_}")

    def mf(acc, a, b, first):
        c = "0" if first else vr(acc, 16)
        if CFG["x_nomfma"]:
            e("s_nop 0")
            return
        e(f"v_mfma_f32_32x32x16_bf16 {vr(acc, 16)}, {a}, {b}, {c}")

    def rd_wb(dst, vaddr, lo, s, n):
        for u in range(2):
            e.ds(f"ds_read_b64_tr_b16 {vr(dst + 2 * u, 2)}, v{vaddr} offset:{lo + (16 * s + 4 * u) * 128}", ("rd", n))

    def rd_wa(dst, j, lo, s, n):
        for u in range(2):
            e.ds(f"ds_read_b64_tr_b16 {vr(dst + 2 * u, 2)}, v{V_WA} offset:{lo + (16 * s + 4 * u) * 96 + 32 * j}", ("rd", n))

    ACC_RE, ACC_IM, ACC_A0, ACC_B0 = 24, 40, 56, 72
    FR = 88
    ER, EI, TGL, TGH = 112, 113, 114, 115
    LR, LI, L16R, L16I, CR2, CI2, CAR, CAI = range(120, 128)
    LSR, LSI, L128R, L128I, L256R, L256I = range(104, 110)
    e(f"s_lshl_b32 s{S_T0}, s{S_RW}, 12")
    e(f"s_sub_u32 s{S_T0}, 16384, s{S_T0}")
    for s in range(4):
        e(f"v_add_u32 v{V_BA + s}, s{S_T0}, v{V_XA + s}")
    e(f"s_mul_i32 s{S_T2}, s{S_RW}, {SLOT}")
    e(f"s_add_u32 s{S_T2}, s{S_T2}, {WD_STAGE}")
    e(f"v_lshrrev_b32 v{T2}, 5, v{V_LANE}")
    e(f"v_bfe_u32 v{V_WDA}, v{V_LANE}, 2, 2")
    e(f"v_lshl_add_u32 v{V_WDA}, v{T2}, 2, v{V_WDA}")
    e(f"v_lshlrev_b32 v{V_WDA}, 6, v{V_WDA}")
    e(f"v_lshl_add_u32 v{V_WDA}, v{T1}, 5, v{V_WDA}")
    e(f"v_add3_u32 v{V_WDA}, v{V_WDA}, v{T3}, s{S_T2}")
    e(f"s_lshl_b32 s{S_T0}, s{S_RW}, 9")
    e(f"s_add_u32 s{S_T0}, s{S_T0}, {E_AREA}")
    e(f"v_and_b32 v{T0}, 31, v{V_LANE}")
    e(f"v_lshlrev_b32 v{V_EA}, 8, v{T2}")
    e(f"v_lshl_add_u32 v{V_EA}, v{T0}, 3, v{V_EA}")
    e(f"v_add_u32 v{V_EA}, s{S_T0}, v{V_EA}")
    srd(e, SDBG, P_DBG, 256)
    e(f"s_cmp_eq_u32 s{S_RB}, 0")
    e("s_cbranch_scc0 K1_NOLEAD")
    e(f"s_cmp_eq_u32 s{S_RW}, 3")
    e("s_cbranch_scc0 K1_NOLEAD")
    e("s_memrealtime s[0:1]")
    e(f"s_lshl_b32 s{S_T0}, s{S_CB}, 3")
    e("s_waitcnt lgkmcnt(0)")
    e("s_or_b32 s0, s0, 1")
    e(f"v_mov_b32 v{TGL}, s0")
    e(f"v_mov_b32 v{TGH}, s1")
    e("s_mov_b64 exec, 1")
    e(f"buffer_store_dwordx2 {vr(TGL, 2)}, off, {sr(SDBG, 4)}, s{S_T0} sc1")
    e("s_mov_b64 exec, -1")
    e.label("K1_NOLEAD")

    SJ = ACC_B0
    R_X0, R_X1, R_GW = SJ, SJ + 4, SJ + 8
    G0, G1, P2 = SJ + 12, SJ + 13, SJ + 14
    P0, P1 = CAR, CAI

    def sj_loads1():
        it = []
        it.append(block(e, [
            lambda: srd(e, ST1, P_LRE, 1024), lambda: srd(e, ST2, P_LIM, 1024), lambda: srd(e, ST3, P_LDT, 1024),
            f"v_and_b32 v{T0}, 31, v{V_LANE}",
            f"s_lshl_b32 s{S_T0}, s{S_CB}, 6",
            f"v_lshl_add_u32 v{T0}, v{T0}, 1, s{S_T0}",
            lambda: e.vmem(f"buffer_load_ushort v{P0}, v{T0}, {sr(ST1, 4)}, 0 offen", "sj1"),
            lambda: e.vmem(f"buffer_load_ushort v{P1}, v{T0}, {sr(ST2, 4)}, 0 offen", "sj1"),
            lambda: e.vmem(f"buffer_load_ushort v{P2}, v{T0}, {sr(ST3, 4)}, 0 offen", "sj1")]))
        it.append(block(e, [
            f"s_lshl_b32 s{S_T0}, s{S_RB}, 7",
            f"s_lshl_b32 s{S_T1}, s{S_CB}, 3",
            f"s_add_u32 s{S_T0}, s{S_T0}, s{S_T1}",
            f"s_lshl_b32 s{S_T1}, s{S_RW}, 1",
            f"s_add_u32 s{S_GROW}, s{S_T0}, s{S_T1}",
            f"s_lshl_b32 s{S_T0}, s{S_GROW}, 10",
            lambda: e.vmem(f"buffer_load_dwordx4 {vr(R_X0, 4)}, v{V_ST}, {sr(SX, 4)}, s{S_T0} offen", "sj1"),
            lambda: e.vmem(f"buffer_load_dwordx4 {vr(R_X1, 4)}, v{V_ST}, {sr(SX, 4)}, s{S_T0} offen offset:1024", "sj1")]))
        it.append(block(e, [
            lambda: srd(e, ST1, P_GW, 1024),
            lambda: e.vmem(f"buffer_load_dwordx4 {vr(R_GW, 4)}, v{V_ST}, {sr(ST1, 4)}, 0 offen", "sj1")]))
        return it

    def tag_load():
        e(f"s_lshl_b32 s{S_T0}, s{S_CB}, 3")
        e.vmem(f"buffer_load_dwordx2 {vr(TGL, 2)}, off, {sr(SDBG, 4)}, s{S_T0} sc1", "tag")

    def cmul(dr, di, ar_, ai, br, bi, t):
        return [f"v_mul_f32 v{t}, v{ai}, v{bi}",
                f"v_mul_f32 v{t + 1}, v{ar_}, v{bi}",
                f"v_fma_f32 v{t}, v{ar_}, v{br}, -v{t}",
                f"v_fma_f32 v{di}, v{ai}, v{br}, v{t + 1}",
                f"v_mov_b32 v{dr}, v{t}"]

    def sj_compute1():
        it = [lambda: e.wait_vm("sj1")]
        tt = T0
        it += [f"v_lshlrev_b32 v{P0}, 16, v{P0}",
               f"v_lshlrev_b32 v{P1}, 16, v{P1}",
               f"v_lshlrev_b32 v{P2}, 16, v{P2}",
               f"v_mul_f32 v{P2}, {LOG2E:#x}, v{P2}",
               f"v_exp_f32 v{P2}, v{P2}",
               "s_nop 0",
               f"v_cvt_pk_bf16_f32 v{P2}, v{P2}, v{P2}",
               f"v_lshlrev_b32 v{P2}, 16, v{P2}",
               f"v_mul_f32 v{tt}, v{P2}, v{P0}",
               f"v_mul_f32 v{tt + 1}, v{P2}, v{P1}",
               f"v_mul_f32 v{tt}, {LOG2E:#x}, v{tt}",
               f"v_mul_f32 v{tt + 1}, 0.15915494, v{tt + 1}",
               f"v_exp_f32 v{tt}, v{tt}",
               f"v_rndne_f32 v{tt + 2}, v{tt + 1}",
               f"v_sub_f32 v{tt + 1}, v{tt + 1}, v{tt + 2}",
               f"v_cos_f32 v{LR}, v{tt + 1}",
               f"v_sin_f32 v{LI}, v{tt + 1}",
               f"v_mul_f32 v{tt + 2}, v{P0}, v{P0}",
               f"v_mul_f32 v{LR}, v{LR}, v{tt}",
               f"v_mul_f32 v{LI}, v{LI}, v{tt}",
               f"v_fmac_f32 v{tt + 2}, v{P1}, v{P1}",
               f"v_add_f32 v{tt}, -1.0, v{LR}",
               f"v_rcp_f32 v{tt + 2}, v{tt + 2}",
               f"v_mul_f32 v{CR2}, v{tt}, v{P0}",
               f"v_mul_f32 v{CI2}, v{LI}, v{P0}",
               f"v_fmac_f32 v{CR2}, v{LI}, v{P1}",
               f"v_fma_f32 v{CI2}, -v{tt}, v{P1}, v{CI2}",
               f"v_add_f32 v{tt + 2}, v{tt + 2}, v{tt + 2}",
               f"v_mul_f32 v{CR2}, v{CR2}, v{tt + 2}",
               f"v_mul_f32 v{CI2}, v{CI2}, v{tt + 2}"]
        it += cmul(L16R, L16I, LR, LI, LR, LI, tt)
        for _ in range(3):
            it += cmul(L16R, L16I, L16R, L16I, L16R, L16I, tt)
        wl, wh, a0, a1 = T0, T1, T2, T3
        it += [f"v_mov_b32 v{G0}, 0", f"v_mov_b32 v{G1}, 0"]
        for d in range(4):
            it += [f"v_lshlrev_b32 v{wl}, 16, v{R_GW + d}",
                   f"v_and_b32 v{wh}, 0xffff0000, v{R_GW + d}"]
            for rx, g in ((R_X0, G0), (R_X1, G1)):
                it += [f"v_lshlrev_b32 v{a0}, 16, v{rx + d}",
                       f"v_and_b32 v{a1}, 0xffff0000, v{rx + d}",
                       f"v_mul_f32 v{a0}, v{a0}, v{wl}",
                       f"v_mul_f32 v{a1}, v{a1}, v{wh}",
                       f"v_cvt_pk_bf16_f32 v{a0}, v{a0}, v{a1}",
                       f"v_and_b32 v{a1}, 0xffff0000, v{a0}",
                       f"v_lshlrev_b32 v{a0}, 16, v{a0}",
                       f"v_add_f32 v{g}, v{g}, v{a1}",
                       f"v_add_f32 v{g}, v{g}, v{a0}"]
        for d in ("row_shr:1 row_mask:0xf bank_mask:0xf", "row_shr:2 row_mask:0xf bank_mask:0xf",
                  "row_shr:4 row_mask:0xf bank_mask:0xf", "row_shr:8 row_mask:0xf bank_mask:0xf",
                  "row_bcast:15 row_mask:0xa bank_mask:0xf", "row_bcast:31 row_mask:0xc bank_mask:0xf"):
            it += ["s_nop 1",
                   f"v_add_f32_dpp v{G0}, v{G0}, v{G0} {d}",
                   f"v_add_f32_dpp v{G1}, v{G1}, v{G1} {d}"]
        it.append(block(e, ["s_nop 1",
                            f"v_readlane_b32 s{S_T0}, v{G0}, 63",
                            f"v_readlane_b32 s{S_T1}, v{G1}, 63",
                            "s_nop 1",
                            f"v_mov_b32 v{a0}, s{S_T0}",
                            f"v_writelane_b32 v{a0}, s{S_T1}, 1"]))
        it += ["s_nop 0",
               f"v_cvt_pk_bf16_f32 v{a0}, v{a0}, v{a0}",
               f"v_lshlrev_b32 v{a0}, 16, v{a0}",
               f"v_mul_f32 v{a0}, s{S_NL2E}, v{a0}",
               f"v_exp_f32 v{a0}, v{a0}",
               f"v_lshlrev_b32 v{wl}, 3, v{V_LANE}",
               f"v_add_f32 v{a0}, 1.0, v{a0}",
               f"v_cmp_gt_u32 vcc, 2, v{V_LANE}",
               f"v_rcp_f32 v{a0}, v{a0}",
               f"v_mov_b32 v{wh}, {OOB}",
               f"v_cvt_pk_bf16_f32 v{a0}, v{a0}, v{a0}",
               f"v_cndmask_b32 v{wl}, v{wh}, v{wl}, vcc",
               f"v_lshlrev_b32 v{a0}, 16, v{a0}",
               f"v_sub_f32 v{a1}, 1.0, v{a0}",
               f"v_cvt_pk_bf16_f32 v{a1}, v{a1}, v{a1}",
               f"v_lshlrev_b32 v{a1}, 16, v{a1}"]
        it.append(block(e, [
            f"s_lshl_b32 s{S_T0}, s{S_GROW}, 3",
            f"s_add_u32 s{S_T0}, s{S_T0}, {G_OFF:#x}",
            lambda: e.vmem(f"buffer_store_dwordx2 {vr(a0, 2)}, v{wl}, {sr(SWS, 4)}, s{S_T0} offen {CFG['st_flag']}", "st")]))
        return it

    def params2():
        tt = T0
        it = [f"v_cmp_lt_u32 vcc, 31, v{V_LANE}",
              f"v_mov_b32 v{LSI}, 0",
              f"v_mov_b32 v{LSR}, 1.0",
              f"v_cndmask_b32 v{LSI}, v{LSI}, v{L16I}, vcc",
              f"v_cndmask_b32 v{LSR}, v{LSR}, v{L16R}, vcc"]
        it += cmul(L128R, L128I, L16R, L16I, L16R, L16I, tt)
        for bit in range(2):
            it += cmul(L256R, L256I, LSR, LSI, L128R, L128I, tt)
            it.append(block(e, [f"s_bitcmp1_b32 s{S_RW}, {bit}", "s_cselect_b64 vcc, -1, 0"]))
            it += ["s_nop 1",
                   f"v_cndmask_b32 v{LSR}, v{LSR}, v{L256R}, vcc",
                   f"v_cndmask_b32 v{LSI}, v{LSI}, v{L256I}, vcc"]
            it += cmul(L128R, L128I, L128R, L128I, L128R, L128I, tt)
        it += cmul(L256R, L256I, L128R, L128I, L128R, L128I, tt)
        return it

    R_WD, R_C = ACC_A0, ACC_A0 + 12
    V_PK = 110

    def sj_loads2():
        it = []
        it.append(block(e, [
            f"s_cmp_lt_u32 s{S_RW}, 2",
            lambda: srd_sel(e, ST1, P_CRE, P_CIM, 512 * 1024),
            f"v_and_b32 v{V_PK}, 31, v{V_LANE}",
            f"v_lshrrev_b32 v{V_PK + 1}, 5, v{V_LANE}",
            f"v_lshlrev_b32 v{V_PK}, 10, v{V_PK}",
            f"v_lshl_add_u32 v{V_PK}, v{V_PK + 1}, 4, v{V_PK}",
            f"s_lshl_b32 s{S_T0}, s{S_NB}, 15",
            f"s_lshl_b32 s{S_T1}, s{S_CBQ}, 6",
            f"s_add_u32 s{S_T0}, s{S_T0}, s{S_T1}",
            f"s_and_b32 s{S_T1}, s{S_RW}, 1",
            f"s_lshl_b32 s{S_T1}, s{S_T1}, 5",
            f"s_add_u32 s{S_T0}, s{S_T0}, s{S_T1}",
            lambda: e.vmem(f"buffer_load_dwordx4 {vr(R_C, 4)}, v{V_PK}, {sr(ST1, 4)}, s{S_T0} offen", "sj2")]))
        it.append(block(e, [
            lambda: srd(e, ST2, P_WD, 1792 * 1024),
            f"v_lshrrev_b32 v{V_PK}, 2, v{V_LANE}",
            f"v_lshlrev_b32 v{V_PK}, 10, v{V_PK}",
            f"v_and_b32 v{V_PK + 1}, 3, v{V_LANE}",
            f"v_lshl_add_u32 v{V_PK}, v{V_PK + 1}, 4, v{V_PK}",
            f"s_add_u32 s{S_JT1}, s{S_RW}, 4",
            f"s_min_u32 s{S_JT1}, s{S_JT1}, 6",
            f"s_mul_i32 s{S_SLT}, s{S_RW}, {SLOT}"]))
        for idx, sj in enumerate((S_RW, S_JT1)):
            it.append(block(e, [
                f"s_mul_i32 s{S_T0}, s{S_CBQ}, 48",
                f"s_add_u32 s{S_T0}, s{S_T0}, 1024",
                f"s_lshl_b32 s{S_T1}, s{S_CBQ}, 6",
                f"s_sub_u32 s{S_T1}, s{S_T1}, 48",
                f"s_cmp_lt_u32 s{sj}, 3",
                f"s_cselect_b32 s{S_T0}, s{S_T0}, s{S_T1}",
                f"s_lshl_b32 s{S_T1}, s{sj}, 4",
                f"s_add_u32 s{S_T0}, s{S_T0}, s{S_T1}",
                f"s_lshl_b32 s{S_T0}, s{S_T0}, 10",
                f"s_lshl_b32 s{S_T1}, s{S_NB}, 6",
                f"s_add_u32 s{S_T0}, s{S_T0}, s{S_T1}",
                f"s_add_u32 m0, s{S_SLT}, {WD_STAGE + idx * 1024}",
                "s_nop 0",
                lambda: e.vmem(f"buffer_load_dwordx4 v{V_PK}, {sr(ST2, 4)}, s{S_T0} offen lds", "sj2")]))
        return it

    def sj_store2():
        it = [lambda: e.wait_vm("sj2")]
        it.append(block(e, [
            f"s_lshr_b32 s{S_T0}, s{S_NB}, 1",
            f"s_mul_i32 s{S_T0}, s{S_T0}, {KS * 2048}",
            f"s_and_b32 s{S_T1}, s{S_NB}, 1",
            f"s_lshl_b32 s{S_T1}, s{S_T1}, 10",
            f"s_add_u32 s{S_W2B}, s{S_T0}, s{S_T1}",
            f"s_add_u32 s{S_W2B}, s{S_W2B}, {W2_OFF:#x}",
            f"s_lshl_b32 s{S_T0}, s{S_CBQ}, 2",
            f"s_add_u32 s{S_T0}, s{S_T0}, s{S_RW}",
            f"s_lshl_b32 s{S_T0}, s{S_T0}, 11",
            f"s_add_u32 s{S_T0}, s{S_T0}, s{S_W2B}",
            lambda: e.vmem(f"buffer_store_dwordx4 {vr(R_C, 4)}, v{V_ST}, {sr(SWS, 4)}, s{S_T0} offen {CFG['st_flag']}", "st")]))
        for idx in range(2):
            for u in range(2):
                it.append(lambda idx=idx, u=u: e.ds(
                    f"ds_read_b64_tr_b16 {vr(R_WD + 4 * idx + 2 * u, 2)}, v{V_WDA} offset:{idx * 1024 + u * 512}", "wd"))
        it += ["s_nop 0"] * 4
        it.append(lambda: e.wait_lg("wd"))
        for idx, sj in enumerate((S_RW, S_JT1)):
            it.append(block(e, [
                f"s_mul_i32 s{S_T0}, s{S_CBQ}, 7",
                f"s_add_u32 s{S_T0}, s{S_T0}, s{sj}",
                f"s_add_u32 s{S_T0}, s{S_T0}, 64",
                f"s_lshl_b32 s{S_T0}, s{S_T0}, 11",
                f"s_add_u32 s{S_T0}, s{S_T0}, s{S_W2B}",
                lambda idx=idx: e.vmem(f"buffer_store_dwordx4 {vr(R_WD + 4 * idx, 4)}, v{V_ST}, {sr(SWS, 4)}, s{S_T0} offen {CFG['st_flag']}", "st")]))
        return it

    class Role0:
        pf = False

        @staticmethod
        def reads(n):
            st = steps[n]
            C = chunk_of(st)
            lo = (C % 2) * SLOT
            s = st[2]
            tg = lambda: toggle(C, [V_XA + i for i in range(4)] + [V_BA + i for i in range(4)] + [V_WB], [V_WA]) if s == 0 else None
            if st[0] == "A":
                fb = FR + 12 * (n % 2)
                return [lambda: (tg(), e.ds(f"ds_read_b128 {ar(4 * n, 4)}, v{V_XA + s} offset:{lo}", ("rd", n)),
                                 e.ds(f"ds_read_b128 {vr(fb, 4)}, v{V_BA + s} offset:{lo}", ("rd", n))),
                        lambda: e.ds(f"ds_read_b128 {vr(fb + 4, 4)}, v{V_BA + s} offset:{lo + 4096}", ("rd", n)),
                        lambda: rd_wb(fb + 8, V_WB, lo, s, n)]
            return [lambda: (tg(), rd_wa(FR + 12 * (n % 2), 0, lo, s, n))]

        @staticmethod
        def mfmas(n):
            st = steps[n]
            fb = FR + 12 * (n % 2)
            if st[0] == "A":
                return [lambda: mf(ACC_RE, ar(4 * n, 4), vr(fb, 4), n == 0),
                        lambda: mf(ACC_IM, ar(4 * n, 4), vr(fb + 4, 4), n == 0),
                        lambda: mf(ACC_A0, vr(fb + 8, 4), ar(4 * n, 4), n == 0)]
            k = n - 32
            return [lambda: mf(ACC_B0, vr(fb, 4), ar(4 * k, 4), k == 0)]

    def horner(dst, src, lam, add):
        e(f"v_fma_f32 v{dst[0]}, v{lam[0]}, v{src[0]}, v{add[0]}")
        e(f"v_fma_f32 v{dst[1]}, v{lam[0]}, v{src[1]}, v{add[1]}")
        e(f"v_fma_f32 v{dst[0]}, -v{lam[1]}, v{src[1]}, v{dst[0]}")
        e(f"v_fma_f32 v{dst[1]}, v{lam[1]}, v{src[0]}, v{dst[1]}")

    def ssm_p12():
        e.flush()
        e(f"v_mov_b32 v{T2}, 0")
        e(f"v_mov_b32 v{T3}, 0")
        e.ds(f"ds_write_b64 v{V_EA}, {vr(T2, 2)}", "e")
        e("s_nop 7")
        pa, pb = (ER, EI), (T0, T1)
        cur = (ACC_RE, ACC_IM)
        for i in range(1, 16):
            dst = pa if i % 2 else pb
            horner(dst, cur, (LR, LI), (ACC_RE + i, ACC_IM + i))
            cur = dst
        assert cur == pa
        e.ds(f"ds_write_b64 v{V_EA}, {vr(ER, 2)} offset:2048", "e")
        e(f"s_lshl_b32 s{S_T0}, s{S_CB}, 13")
        e(f"s_add_u32 s{S_T0}, s{S_T0}, {T_OFF:#x}")
        e(f"s_add_u32 s{ST}, s{P_WS}, s{S_T0}")
        e(f"s_addc_u32 s{ST + 1}, s{P_WS + 1}, 0")
        e(f"s_mov_b32 s{ST + 2}, 8192")
        e(f"s_mov_b32 s{ST + 3}, 0x00020000")
        e.wait_lg_all()
        e("s_barrier")
        regs = [92, 94, 96, 98, 104, 106, 108]
        for j in range(6, -1, -1):
            e.ds(f"ds_read_b64 {vr(regs[j], 2)}, v{V_EA} offset:{2048 - 256 * (j + 1)}", ("pe", j))
        e(f"v_lshlrev_b32 v{T2}, 4, v{V_LANE}")
        e(f"s_lshl_b32 s{S_T0}, s{S_RB}, 9")
        e(f"s_sub_u32 s{S_T0}, s{S_T0}, 512")
        e(f"v_add_u32 v{T2}, s{S_T0}, v{T2}")
        e.wait_vm("tag")
        e(f"s_mov_b32 s{S_SO}, 0x40000")
        e.label("K1_TAGCHK")
        e(f"v_readfirstlane_b32 s{S_T1}, v{TGL}")
        e(f"s_sub_u32 s{S_SO}, s{S_SO}, 1")
        e(f"s_cmp_eq_u32 s{S_SO}, 0")
        e("s_cbranch_scc1 K1_TAGOK")
        e(f"s_cmp_lg_u32 s{S_T1}, 0")
        e("s_cbranch_scc1 K1_TAGOK")
        e("s_sleep 1")
        e(f"s_lshl_b32 s{S_T0}, s{S_CB}, 3")
        e(f"buffer_load_dwordx2 {vr(TGL, 2)}, off, {sr(SDBG, 4)}, s{S_T0} sc1")
        e("s_waitcnt vmcnt(0)")
        e("s_branch K1_TAGCHK")
        e.label("K1_TAGOK")
        pa, pb = (CAR, CAI), (T0, T1)
        cur = (regs[6], regs[6] + 1)
        for j in range(5, -1, -1):
            e.wait_lg(("pe", j))
            dst = pa if j % 2 == 0 else pb
            horner(dst, cur, (L16R, L16I), (regs[j], regs[j] + 1))
            cur = dst
        assert cur == pa
        e(f"s_cmp_eq_u32 s{S_RW}, 3")
        e("s_cbranch_scc0 K1_NOPUB")
        e(f"s_cmp_eq_u32 s{S_RB}, 15")
        e("s_cbranch_scc1 K1_NOPUB")
        e(f"v_fma_f32 v{ER}, v{L16R}, v{CAR}, v{ER}")
        e(f"v_fma_f32 v{EI}, v{L16R}, v{CAI}, v{EI}")
        e(f"v_fma_f32 v{ER}, -v{L16I}, v{CAI}, v{ER}")
        e(f"v_fma_f32 v{EI}, v{L16I}, v{CAR}, v{EI}")
        e("s_mov_b32 exec_lo, 0")
        e(f"buffer_store_dwordx4 {vr(ER, 4)}, v{T2}, {sr(ST, 4)}, 0 offen sc1")
        e("s_mov_b32 exec_lo, -1")
        e.label("K1_NOPUB")
        stamp(e, 6, f"s{S_W}", V_SV, SWS)
        e.q(*glu_epilogue(ACC_A0, 3))
        e.q(*sj_loads2())
        e.q(*params2())

    V_TO, V_LIM = 10, 11

    def t_loads():
        out = [f"v_mov_b32 v{T0}, v{V_TO}"]
        for m in range(8):
            out.append(f"buffer_load_dwordx4 {ar(4 * m, 4)}, v{T0}, {sr(ST, 4)}, 0 offen sc1")
            if m < 7:
                out.append(f"v_subrev_u32 v{T0}, 1024, v{T0}")
        return out

    def t_first():
        e.flush()
        e(f"v_lshrrev_b32 v{T1}, 5, v{V_LANE}")
        e(f"v_and_b32 v{V_TO}, 31, v{V_LANE}")
        e(f"v_lshlrev_b32 v{V_TO}, 4, v{V_TO}")
        e(f"v_sub_u32 v{V_LIM}, s{S_RB}, v{T1}")
        e(f"v_lshl_add_u32 v{V_TO}, v{V_LIM}, 9, v{V_TO}")
        e(f"v_subrev_u32 v{V_TO}, 512, v{V_TO}")
        for l in t_loads():
            if l.startswith("buffer"):
                e.q(lambda l=l: e.vmem(l, "t"))
            else:
                e.q(lambda l=l: e(l))

    def ssm_p3():
        e(f"v_mov_b32 v{ER}, 0")
        e(f"v_mov_b32 v{EI}, 0")
        e(f"s_cmp_eq_u32 s{S_RB}, 0")
        e("s_cbranch_scc1 K1_NOG")
        e(f"s_mov_b32 s{S_SO}, 0x40000")
        TB = ACC_A0
        e.label("K1_CHECK")
        e("s_waitcnt vmcnt(0)")
        e("s_mov_b64 s[0:1], 0")
        for m in range(8):
            e(f"v_accvgpr_read_b32 v{T0}, a{4 * m + 2}")
            e(f"v_accvgpr_read_b32 v{T1}, a{4 * m + 3}")
            e(f"v_accvgpr_read_b32 v{TB + 2 * m}, a{4 * m}")
            e(f"v_accvgpr_read_b32 v{TB + 2 * m + 1}, a{4 * m + 1}")
            e(f"v_cmp_ne_u64 {sr(ST1, 2)}, {vr(T0, 2)}, {vr(TGL, 2)}")
            e(f"v_cmp_lt_i32 vcc, {2 * m}, v{V_LIM}")
            e(f"s_and_b64 {sr(ST1, 2)}, {sr(ST1, 2)}, vcc")
            e(f"s_or_b64 s[0:1], s[0:1], {sr(ST1, 2)}")
        e("s_cmp_eq_u64 s[0:1], 0")
        e("s_cbranch_scc1 K1_GOT")
        e(f"s_sub_u32 s{S_SO}, s{S_SO}, 1")
        e(f"s_cmp_eq_u32 s{S_SO}, 0")
        e("s_cbranch_scc1 K1_GOT")
        e("s_sleep 1")
        for l in t_loads():
            e(l)
        e("s_branch K1_CHECK")
        e.label("K1_GOT")
        pa, pb = (ER, EI), (T0, T1)
        cur = (TB + 14, TB + 15)
        for m in range(6, -1, -1):
            dst = pa if m % 2 == 0 else pb
            horner(dst, cur, (L256R, L256I), (TB + 2 * m, TB + 2 * m + 1))
            cur = dst
        assert cur == pa
        e(f"v_mov_b32 v{T0}, v{ER}")
        e(f"v_mov_b32 v{T1}, v{EI}")
        e("s_nop 1")
        e(f"v_permlane32_swap_b32 v{ER}, v{T0}")
        e(f"v_permlane32_swap_b32 v{EI}, v{T1}")
        e("s_nop 0")
        e(f"v_fma_f32 v{ER}, v{L128R}, v{T0}, v{ER}")
        e(f"v_fma_f32 v{EI}, v{L128R}, v{T1}, v{EI}")
        e(f"v_fma_f32 v{ER}, -v{L128I}, v{T1}, v{ER}")
        e(f"v_fma_f32 v{EI}, v{L128I}, v{T0}, v{EI}")
        e.label("K1_NOG")
        e(f"v_fma_f32 v{CAR}, v{LSR}, v{ER}, v{CAR}")
        e(f"v_fma_f32 v{CAI}, v{LSR}, v{EI}, v{CAI}")
        e(f"v_fma_f32 v{CAR}, -v{LSI}, v{EI}, v{CAR}")
        e(f"v_fma_f32 v{CAI}, v{LSI}, v{ER}, v{CAI}")
        hr, hi = CAR, CAI

        def outx(k):
            e(f"v_mul_f32 v{T1}, v{CI2}, v{ACC_IM + k}")
            e(f"v_mul_f32 v{T0}, v{CI2}, v{ACC_RE + k}")
            e(f"v_fma_f32 v{ACC_RE + k}, v{CR2}, v{ACC_RE + k}, -v{T1}")
            e(f"v_fma_f32 v{ACC_IM + k}, -v{CR2}, v{ACC_IM + k}, -v{T0}")
        for i in range(16):
            e(f"v_fma_f32 v{ACC_RE + i}, v{LR}, v{hr}, v{ACC_RE + i}")
            e(f"v_fma_f32 v{ACC_IM + i}, v{LR}, v{hi}, v{ACC_IM + i}")
            e(f"v_fma_f32 v{ACC_RE + i}, -v{LI}, v{hi}, v{ACC_RE + i}")
            e(f"v_fma_f32 v{ACC_IM + i}, v{LI}, v{hr}, v{ACC_IM + i}")
            if i:
                outx(i - 1)
            hr, hi = ACC_RE + i, ACC_IM + i
        outx(15)
        for base in (ACC_RE, ACC_IM):
            for i in range(8):
                e(f"v_cvt_pk_bf16_f32 v{base + i}, v{base + 2 * i}, v{base + 2 * i + 1}")
        e(f"s_mul_i32 s{S_T0}, s{S_RW}, {SLOT}")
        e(f"s_add_u32 s{S_T0}, s{S_T0}, {TR_BUF}")
        e(f"v_and_b32 v{T0}, 31, v{V_LANE}")
        e(f"v_lshlrev_b32 v{T0}, 6, v{T0}")
        e(f"v_lshrrev_b32 v{T1}, 5, v{V_LANE}")
        e(f"v_lshl_add_u32 v{T0}, v{T1}, 5, v{T0}")
        e(f"v_add_u32 v{T0}, s{S_T0}, v{T0}")
        e(f"ds_write_b128 v{T0}, {vr(ACC_RE, 4)}")
        e(f"ds_write_b128 v{T0}, {vr(ACC_RE + 4, 4)} offset:16")
        e(f"ds_write_b128 v{T0}, {vr(ACC_IM, 4)} offset:2048")
        e(f"ds_write_b128 v{T0}, {vr(ACC_IM + 4, 4)} offset:2064")
        e(f"v_bfe_u32 v{T2}, v{V_LANE}, 2, 2")
        e(f"v_lshl_add_u32 v{T2}, v{T1}, 3, v{T2}")
        e(f"v_lshlrev_b32 v{T2}, 6, v{T2}")
        e(f"v_and_b32 v{T3}, 1, v{V_LANE}")
        e(f"v_lshl_add_u32 v{T2}, v{T3}, 5, v{T2}")
        e(f"v_bfe_u32 v{T3}, v{V_LANE}, 1, 1")
        e(f"v_lshl_add_u32 v{T2}, v{T3}, 3, v{T2}")
        e(f"v_bfe_u32 v{T3}, v{V_LANE}, 4, 1")
        e(f"v_lshl_add_u32 v{T2}, v{T3}, 4, v{T2}")
        e(f"v_add_u32 v{T2}, s{S_T0}, v{T2}")
        e("s_waitcnt lgkmcnt(0)")
        for q in range(4):
            for u in range(2):
                e(f"ds_read_b64_tr_b16 {vr(FR + 4 * q + 2 * u, 2)}, v{T2} offset:{(q >> 1) * 2048 + (q & 1) * 1024 + u * 256}")
        for q in range(4):
            e(f"s_add_u32 s{S_SO}, s{S_A2S}, {q * 2048}")
            e(f"s_waitcnt lgkmcnt({6 - 2 * q})")
            e(f"buffer_store_dwordx4 {vr(FR + 4 * q, 4)}, v{V_ST}, {sr(SWS, 4)}, s{S_SO} offen {CFG['st_flag']}")

    hooks0 = {
        ("post", 1): lambda: e.q(*sj_loads1()),
        ("post", 3): lambda: e.q(*sj_compute1()),
        ("post", 6): lambda: qdma([tag_load]),
        ("pre", 8): lambda: e.flush(),
        ("step", 32): ssm_p12,
        ("post", 10): lambda: e.q(*sj_store2()),
        ("step", CFG["tstep"]): t_first,
    }
    main_loop(Role0, hooks0, CFG["fillA0"], CFG["fillB0"], (ER, EI, 15))
    e.flush()
    stamp(e, 2, f"s{S_W}", V_SV, SWS)
    e("s_nop 7")
    e("s_nop 3")
    e.q(*glu_epilogue(ACC_B0, 0))
    e.flush()
    stamp(e, 3, f"s{S_W}", V_SV, SWS)
    ssm_p3()
    stamp(e, 4, f"s{S_W}", V_SV, SWS)
    e("s_endpgm")

    e.label("K1_ROLE1")
    e.vm = list(pro_vm)
    e.lg = []
    ACC_A = [24, 40, 56]
    ACC_B = [72, 88]
    FR1 = 104
    e(f"v_xor_b32 v{V_WB + 1}, 64, v{V_WB}")
    e(f"v_xor_b32 v{V_WB + 2}, 96, v{V_WB}")
    e(f"v_xor_b32 v{V_WB}, 32, v{V_WB}")

    if CFG["prio"]:
        e("s_setprio 1")

    class Role1:
        pf = True

        @staticmethod
        def reads(n):
            st = steps[n]
            C = chunk_of(st)
            lo = (C % 2) * SLOT
            fb = FR1 + 12 * (n % 2)
            s = st[2]
            tg = lambda: toggle(C, [V_XA + i for i in range(4)] + [V_WB + i for i in range(3)], [V_WA]) if s == 0 else None
            if st[0] == "A":
                return [lambda: (tg(), e.ds(f"ds_read_b128 {ar(4 * n, 4)}, v{V_XA + s} offset:{lo}", ("rd", n)),
                                 rd_wb(fb, V_WB, lo, s, n)),
                        lambda: rd_wb(fb + 4, V_WB + 1, lo, s, n),
                        lambda: rd_wb(fb + 8, V_WB + 2, lo, s, n)]
            return [lambda: (tg(), rd_wa(fb, 1, lo, s, n)), lambda: rd_wa(fb + 4, 2, lo, s, n)]

        @staticmethod
        def mfmas(n):
            st = steps[n]
            fb = FR1 + 12 * (n % 2)
            if st[0] == "A":
                return [lambda j=j: mf(ACC_A[j], vr(fb + 4 * j, 4), ar(4 * n, 4), n == 0) for j in range(3)]
            k = n - 32
            return [lambda j=j: mf(ACC_B[j], vr(fb + 4 * j, 4), ar(4 * k, 4), k == 0) for j in range(2)]

    def xbar():
        e("s_barrier")
        for j in range(3):
            e.q(*glu_epilogue(ACC_A[j], 4 + j))
    hooks1 = {("step", CFG["xbar1"]): xbar}
    main_loop(Role1, hooks1, CFG["fillA1"], CFG["fillB1"], (9, 22, 23))
    e.flush()
    stamp(e, 2, f"s{S_W}", V_SV, SWS)
    e("s_nop 7")
    e("s_nop 3")
    for j in range(2):
        e.q(*glu_epilogue(ACC_B[j], 1 + j))
    e.flush()
    stamp(e, 3, f"s{S_W}", V_SV, SWS)
    e.label("K1_END")
    e("s_endpgm")
    return e.text()


K2_LDS = 5 * 16384


def gen_k2():
    e = Asm()
    R = CFG["ring"]
    NS = 44
    SEG = 20
    e.raw(".globl k2_kernel\n.p2align 8\n.type k2_kernel,@function\nk2_kernel:")
    e("s_cmp_ge_u32 s2, 256")
    e("s_cbranch_scc1 K2_END")
    e("s_load_dwordx2 s[8:9], s[0:1], 0")
    e("s_load_dwordx2 s[10:11], s[0:1], 64")
    e("s_load_dwordx2 s[12:13], s[0:1], 112")
    e("s_load_dwordx2 s[14:15], s[0:1], 128")
    if CFG["stamp"]:
        e("s_memtime s[46:47]")
    S_MP, S_NP, S_WV = 5, 6, 7
    SA, SW, SG, SXX, SD, SO = 16, 20, 24, 28, 32, 36
    S_CUR, S_CUR2 = 43, 48
    V_LANE, V_OFF, V_LW = 1, 2, 3
    ACC = 64
    e("v_lshrrev_b32 v4, 6, v0")
    e(f"v_and_b32 v{V_LANE}, 63, v0")
    e("s_and_b32 s3, s2, 7")
    e(f"v_readfirstlane_b32 s49, v4")
    e("s_lshr_b32 s4, s2, 3")
    e(f"s_and_b32 s{S_WV}, s49, 3")
    e(f"s_lshr_b32 s{S_MP}, s3, 2")
    e(f"s_lshl_b32 s{S_MP}, s{S_MP}, 1")
    e("s_and_b32 s40, s3, 1")
    e(f"s_add_u32 s{S_MP}, s{S_MP}, s40")
    e(f"s_bfe_u32 s{S_NP}, s3, 0x10001")
    e(f"s_lshl_b32 s{S_MP}, s{S_MP}, 3")
    e("s_lshr_b32 s40, s4, 2")
    e(f"s_add_u32 s{S_MP}, s{S_MP}, s40")
    e(f"s_lshl_b32 s{S_NP}, s{S_NP}, 2")
    e("s_and_b32 s41, s4, 3")
    e(f"s_add_u32 s{S_NP}, s{S_NP}, s41")
    V_PF = 30
    e(f"s_lshl_b32 s{S_CUR}, s41, 11")
    e(f"s_lshl_b32 s{S_CUR2}, s40, 10")
    e(f"v_lshlrev_b32 v{V_OFF}, 4, v{V_LANE}")
    e(f"s_mul_i32 s40, s{S_MP}, {KS * 2048}")
    e(f"s_mul_i32 s41, s{S_WV}, {NS * 2048}")
    e("s_add_u32 s40, s40, s41")
    e(f"s_mul_i32 s42, s{S_NP}, {KS * 2048}")
    e("s_add_u32 s42, s42, s41")
    e(f"s_add_u32 s42, s42, {W2_OFF:#x}")
    e(f"s_add_u32 s{S_CUR}, s{S_CUR}, s40")
    e(f"s_add_u32 s{S_CUR2}, s{S_CUR2}, s42")
    e(f"s_sub_u32 s{S_CUR2}, s{S_CUR2}, 2048")
    e(f"v_mul_u32_u24 v28, 43691, v{V_LANE}")
    e(f"v_lshrrev_b32 v28, 20, v28")
    e(f"v_mul_u32_u24 v29, 24, v28")
    e(f"v_sub_u32 v29, v{V_LANE}, v29")
    e(f"v_lshlrev_b32 v31, 7, v29")
    e(f"v_lshl_add_u32 v31, v28, 13, v31")
    e(f"v_add_u32 v{V_PF}, s{S_CUR}, v31")
    e(f"v_add_u32 v31, s{S_CUR2}, v31")
    e(f"v_cmp_gt_u32 vcc, 16, v29")
    e(f"s_mov_b32 s{SG + 2}, {WS_BYTES:#x}")
    e(f"s_mov_b32 s{SG + 3}, 0x00020000")
    e(f"v_cndmask_b32 v{V_PF}, v31, v{V_PF}, vcc")
    e(f"v_mov_b32 v31, {OOB}")
    e(f"v_cmp_gt_u32 vcc, {24 * CFG['pfg']}, v{V_LANE}")
    e("s_nop 1")
    e(f"v_cndmask_b32 v{V_PF}, v31, v{V_PF}, vcc")
    for d in (SA, SW):
        e(f"s_mov_b32 s{d + 2}, {NS * 2048:#x}")
        e(f"s_mov_b32 s{d + 3}, 0x00020000")
    e("s_waitcnt lgkmcnt(0)")
    e(f"s_add_u32 s{SA}, s14, s40")
    e(f"s_addc_u32 s{SA + 1}, s15, 0")
    e(f"s_add_u32 s{SW}, s14, s42")
    e(f"s_addc_u32 s{SW + 1}, s15, 0")

    e(f"s_mov_b32 s{SG}, s14")
    e(f"s_mov_b32 s{SG + 1}, s15")

    e("s_cmp_lt_u32 s49, 4")
    e("s_cbranch_scc1 K2_COMPUTE")
    if CFG["pf2"]:
        NG = CFG["pfg"]
        for k, g in enumerate(range(CFG["pfs"], 11, NG)):
            if k >= CFG["pfo"]:
                e(f"s_waitcnt vmcnt({CFG['pfo'] - 1})")
            e(f"s_mov_b32 s{S_CUR2}, {g * 8192}")
            if g + NG > 11:
                e(f"s_mov_b64 exec, {(1 << (24 * (11 - g))) - 1:#x}")
            e(f"buffer_load_dword v0, v{V_PF}, {sr(SG, 4)}, s{S_CUR2} offen")
    e("s_endpgm")
    e.label("K2_COMPUTE")

    def loads(i):
        b = 16 * (i % R)
        if i % 2 == 0:
            e(f"s_mov_b32 s{S_CUR}, {i * 2048}")
        o = (i % 2) * 2048
        e.vmem(f"buffer_load_dwordx4 {ar(b, 4)}, v{V_OFF}, {sr(SA, 4)}, s{S_CUR} offen offset:{o}", ("l", i))
        e.vmem(f"buffer_load_dwordx4 {ar(b + 8, 4)}, v{V_OFF}, {sr(SW, 4)}, s{S_CUR} offen offset:{o}", ("l", i))
        e.vmem(f"buffer_load_dwordx4 {ar(b + 4, 4)}, v{V_OFF}, {sr(SA, 4)}, s{S_CUR} offen offset:{o + 1024}", ("l", i))
        e.vmem(f"buffer_load_dwordx4 {ar(b + 12, 4)}, v{V_OFF}, {sr(SW, 4)}, s{S_CUR} offen offset:{o + 1024}", ("l", i))

    for i in range(R):
        loads(i)
    srd(e, SXX, 8, 2048 * 1024)
    srd(e, SD, 10, 1024)
    srd(e, SO, 12, 2048 * 2048)
    V_T, V_GO, V_XO, V_DO, V_OO = 5, 6, 7, 8, 9
    V_G = 10
    V_X = 12
    V_D = 20
    TA, TB = 28, 29
    e(f"v_bfe_u32 v{TA}, v{V_LANE}, 2, 1")
    e(f"v_lshlrev_b32 v{V_T}, 4, v{TA}")
    e(f"v_bfe_u32 v{TA}, v{V_LANE}, 3, 2")
    e(f"v_lshl_add_u32 v{V_T}, v{TA}, 2, v{V_T}")
    e(f"v_and_b32 v{TA}, 3, v{V_LANE}")
    e(f"v_add_u32 v{V_T}, v{V_T}, v{TA}")
    e(f"s_lshl_b32 s40, s{S_MP}, 6")
    e(f"s_lshr_b32 s41, s{S_WV}, 1")
    e("s_lshl_b32 s41, s41, 5")
    e("s_add_u32 s40, s40, s41")
    e(f"v_add_u32 v{V_T}, s40, v{V_T}")
    e(f"s_lshl_b32 s40, s{S_NP}, 6")
    e(f"s_and_b32 s41, s{S_WV}, 1")
    e("s_lshl_b32 s41, s41, 5")
    e("s_add_u32 s40, s40, s41")
    e(f"v_lshrrev_b32 v{TA}, 5, v{V_LANE}")
    e(f"v_lshlrev_b32 v{TA}, 2, v{TA}")
    e(f"v_add_u32 v{TA}, s40, v{TA}")
    e(f"v_lshlrev_b32 v{V_GO}, 3, v{V_T}")
    e(f"v_lshlrev_b32 v{V_DO}, 1, v{TA}")
    e(f"v_lshl_add_u32 v{V_XO}, v{V_T}, 10, v{V_DO}")
    e(f"v_lshlrev_b32 v{V_OO}, 1, v{V_XO}")
    e(f"s_mov_b32 s44, {G_OFF:#x}")
    e(f"s_add_u32 s40, s{S_WV}, 1")
    e(f"s_cmp_eq_u32 s{S_WV}, 0")
    e("s_cselect_b32 s40, 0, s40")
    e("s_lshl_b32 s40, s40, 14")
    e(f"v_add_u32 v{V_LW}, s40, v{V_OFF}")
    V_LR = 4
    e(f"s_lshl_b32 s40, s{S_WV}, 12")
    e(f"v_add_u32 v{V_LR}, s40, v{V_OFF}")
    K2S = STAMP_OFF + (1 << 19)
    stamp(e, 0, f"s{S_WV}", 31, SG, st=45, src="s46", base=K2S)
    stamp(e, 1, f"s{S_WV}", 31, SG, st=45, base=K2S)

    def ep_loads():
        e.vmem(f"buffer_load_dwordx2 {vr(V_G, 2)}, v{V_GO}, {sr(SG, 4)}, s44 offen", "ep")
        for a in range(4):
            e.vmem(f"buffer_load_dwordx2 {vr(V_X + 2 * a, 2)}, v{V_XO}, {sr(SXX, 4)}, 0 offen offset:{16 * a}", "ep")
            e.vmem(f"buffer_load_dwordx2 {vr(V_D + 2 * a, 2)}, v{V_DO}, {sr(SD, 4)}, 0 offen offset:{16 * a}", "ep")

    XD = 32

    def ep_pre():
        it = [lambda: e.wait_vm("ep")]
        for d in range(8):
            o = XD + 2 * d
            it += [f"v_lshlrev_b32 v{o}, 16, v{V_X + d}",
                   f"v_and_b32 v{o + 1}, 0xffff0000, v{V_X + d}",
                   f"v_lshlrev_b32 v{TA}, 16, v{V_D + d}",
                   f"v_and_b32 v{TB}, 0xffff0000, v{V_D + d}",
                   f"v_mul_f32 v{o}, v{o}, v{TA}",
                   f"v_mul_f32 v{o + 1}, v{o + 1}, v{TB}",
                   f"v_cvt_pk_bf16_f32 v{o}, v{o}, v{o + 1}",
                   f"v_and_b32 v{o + 1}, 0xffff0000, v{o}",
                   f"v_lshlrev_b32 v{o}, 16, v{o}"]
        return it

    def write_partial(addr, off0):
        for qd in range(4):
            for g4 in range(4):
                e.ds(f"ds_write_b128 v{addr}, {vr(ACC + 16 * qd + 4 * g4, 4)} offset:{off0 + qd * 4096 + g4 * 1024}", "pw")

    ep_at = max(NS - R - 8, 0)
    for i in range(NS):
        b = 16 * (i % R)
        e.wait_vm(("l", i))
        for tt in range(2):
            for nt in range(2):
                acc = ACC + 16 * (2 * tt + nt)
                c = "0" if i == 0 else vr(acc, 16)
                e(f"v_mfma_f32_32x32x16_bf16 {vr(acc, 16)}, {ar(b + 8 + 4 * nt, 4)}, {ar(b + 4 * tt, 4)}, {c}")
                e.fill(3)
        if i in (0, 10, 20, 30, 43):
            stamp(e, 2 + i // 10, f"s{S_WV}", 31, SG, st=45, base=K2S)
        if i == ep_at:
            ep_loads()
        if i + R < NS:
            loads(i + R)
        if i == ep_at + R + 1:
            e.q(*ep_pre())
        if i == SEG - 1:
            e(f"s_cmp_eq_u32 s{S_WV}, 1")
            e("s_cbranch_scc0 K2_NOFLUSH")
            e("s_nop 7")
            e("s_nop 3")
            write_partial(V_OFF, 16384)
            e("s_waitcnt lgkmcnt(0)")
            e.lg = []
            for r_ in range(64):
                e(f"v_mov_b32 v{ACC + r_}, 0")
            e("s_nop 1")
            e.label("K2_NOFLUSH")
    e.flush()
    e("s_nop 7")
    e("s_nop 3")
    write_partial(V_LW, 0)
    e.wait_lg_all()
    e("s_barrier")
    stamp(e, 7, f"s{S_WV}", 31, SG, st=45, base=K2S)
    PR = [ACC, ACC + 16, ACC + 32, ACC + 48, 48]
    e(f"v_add_u32 v{TA}, 65536, v{V_LR}")
    for g4 in range(4):
        for s in range(4):
            e.ds(f"ds_read_b128 {vr(PR[s] + 4 * g4, 4)}, v{V_LR} offset:{s * 16384 + g4 * 1024}", ("pr", g4))
        e.ds(f"ds_read_b128 {vr(PR[4] + 4 * g4, 4)}, v{TA} offset:{g4 * 1024}", ("pr", g4))
    for g4 in range(4):
        e(f"s_waitcnt lgkmcnt({5 * (3 - g4)})")
        for b in range(4):
            i = 4 * g4 + b
            e(f"v_add_f32 v{PR[0] + i}, v{PR[0] + i}, v{PR[1] + i}")
            e(f"v_add_f32 v{PR[2] + i}, v{PR[2] + i}, v{PR[3] + i}")
        for b in range(4):
            i = 4 * g4 + b
            e(f"v_add_f32 v{PR[0] + i}, v{PR[0] + i}, v{XD + i}")
            e(f"v_add_f32 v{PR[2] + i}, v{PR[2] + i}, v{PR[4] + i}")
        for b in range(4):
            i = 4 * g4 + b
            e(f"v_mul_f32 v{PR[0] + i}, v{PR[0] + i}, v{V_G}")
        for b in range(4):
            i = 4 * g4 + b
            e(f"v_fmac_f32 v{PR[0] + i}, v{PR[2] + i}, v{V_G + 1}")
        e(f"buffer_store_dwordx4 {vr(PR[0] + 4 * g4, 4)}, v{V_OO}, {sr(SO, 4)}, 0 offen offset:{32 * g4}")
    stamp(e, 8, f"s{S_WV}", 31, SG, st=45, base=K2S)
    e.label("K2_END")
    e("s_endpgm")
    return e.text()


def kd(name, nv, acc, ns=102):
    return f""".p2align 6
.amdhsa_kernel {name}
  .amdhsa_next_free_vgpr {nv}
  .amdhsa_next_free_sgpr {ns}
  .amdhsa_accum_offset {acc}
  .amdhsa_group_segment_fixed_size 0
  .amdhsa_kernarg_size 136
  .amdhsa_user_sgpr_count 2
  .amdhsa_user_sgpr_kernarg_segment_ptr 1
  .amdhsa_system_sgpr_workgroup_id_x 1
.end_amdhsa_kernel"""


out = [hdr.rstrip(),
       f"; @launch kernel=k1_kernel grid=(256,1,1) block=(512,1,1) lds={K1_LDS}",
       f"; @launch kernel=k2_kernel grid=(256,1,1) block=(512,1,1) lds={K2_LDS}",
       '.amdgcn_target "amdgcn-amd-amdhsa--gfx950"',
       ".text",
       gen_k1(), gen_k2(),
       '.section .rodata,"a"',
       kd("k1_kernel", 256, 128),
       kd("k2_kernel", 128 + 16 * CFG["ring"], 128, 50)]
print("\n".join(out))
```

```python
import sys
from asmlib import Asm, vr, ar, sr

CFG = dict(
    fillA0=4, fillA1=2, fillB0=10, fillB1=8,
    st_flag="sc1",
    stamp=0,
    pfs="/8/9/10/11/12,13/14/15,16/17", ahead=2, prio=1, pro=2, pf=1,
    xbar1=35,
    tstep=46,
    wstep=42, rstep=52,
    rot2=0, pk=1, ew=1, cint=3, nox=0, ra0=3, stgd=3,
    ra=3, lreq=9, cpre=0, ord=2, nt="", ntc="0,1,2,3,4,5,6,7,8,9,10,11", map1=162, p0=0, cpf=0, cearly=0, split=1, quiet=0, dstop=99, p3at=11, pf0=1, rot=7, pfa=0,
    x_nofill=0, x_nomfma=0, x_nodma=0, x_nobar=0, x_noread=0, x_flood=0, x_nopack=0,
)
for a in sys.argv[1:]:
    k, v = a.split("=")
    CFG[k] = type(CFG[k])(v)

KS = 176
W2_OFF = 12 << 20
G_OFF = 16 << 20
T_OFF = 17 << 20
FW_OFF = T_OFF + (256 << 10)
FX_OFF = FW_OFF + 4096
STAMP_OFF = 18 << 20
WS_BYTES = 20 << 20

SLOT = 40960
PAIR = 2 * SLOT
K1_LDS = 4 * SLOT
WAU = 12288 + 128
STG = 24832
NSTG = 5
TR_BUF = STG + NSTG * 2048
E_AREA = TR_BUF
CNT_ADDR = 3 * SLOT + TR_BUF + 4096

LOG2E = 0x3FB8AA3B
NLOG2E = 0xBFB8AA3B
OOB = "0x7ffffff0"

hdr = open("gated_mix__ssm_conv_s5__glu_gated_glu__prompt.s.ref").read().split("; Override")[0]

P_X, P_LRE, P_LIM, P_BRE, P_BIM, P_CRE, P_CIM, P_LDT = 8, 10, 12, 14, 16, 18, 20, 22
P_DSK, P_BX, P_WG, P_WU, P_WD, P_GW, P_OUT, P_DBG, P_WS = 24, 26, 28, 30, 32, 34, 36, 38, 40
S_RB, S_CB, S_W = 5, 6, 7
S_RW, S_CW = 42, 43
SX, SBM, SWG, SWU, SWA2, SWS, ST, SDBG, ST1, ST2, ST4 = 44, 48, 52, 56, 60, 64, 68, 72, 76, 80, 88
ST3 = ST4
SBI = SWA2
SW2, SA2, SOUT, SW2B = SBM, SWG, SWU, ST4
S_NL2E, S_SO, S_A2S, S_A2L, S_MX, S_MBM, S_MWA, S_T0, S_T1, S_T2 = 92, 93, 94, 95, 96, 97, 98, 99, 100, 101
S_A2E, S_SO2, S_SLT, S_GROW = 84, 85, 86, 87
S_Q, S_W2O = 3, 4
S_MP, S_NP = 26, 27
S_PFM = 10
S_A2X, S_A2Y = 22, 23
S_TAG = 12


def srd(e, d, p, nbytes):
    e(f"s_mov_b32 s{d}, s{p}")
    e(f"s_mov_b32 s{d + 1}, s{p + 1}")
    e(f"s_mov_b32 s{d + 2}, {nbytes:#x}")
    e(f"s_mov_b32 s{d + 3}, 0x00020000")


def srd_sel(e, d, pa, pb, nbytes):
    e(f"s_cselect_b32 s{d}, s{pa}, s{pb}")
    e(f"s_cselect_b32 s{d + 1}, s{pa + 1}, s{pb + 1}")
    e(f"s_mov_b32 s{d + 2}, {nbytes:#x}")
    e(f"s_mov_b32 s{d + 3}, 0x00020000")


def stamp(e, idx, wave_s, tmpv0, srdreg, st=None, src=None, base=STAMP_OFF):
    if not CFG["stamp"]:
        return
    if CFG["stamp"] == 5:
        if idx not in (20, 21, 1, 12, 16, 6, 19, 4, 22, 23, 26, 3):
            return
    elif CFG["stamp"] == 3 and idx not in (20, 21):
        return
    elif CFG["stamp"] != 3 and idx in (20, 21):
        return
    if CFG["stamp"] == 4 and not (idx in (5, 1) or (src is not None and 8 <= idx < 16)):
        return
    if CFG["stamp"] == 2 and base == STAMP_OFF and idx not in (5, 1, 12, 16, 6, 17, 18, 19, 2, 3, 4, 22, 23, 24, 25, 26, 27, 28, 29, 30):
        return
    st = S_T0 if st is None else st
    if src is None:
        e("s_memrealtime s[0:1]" if CFG["stamp"] in (3, 5) else "s_memtime s[0:1]")
        e("s_waitcnt lgkmcnt(0)")
        e.lg = []
        src = "s0"
    e(f"s_lshl_b32 s{st}, s2, 3")
    e(f"s_add_u32 s{st}, s{st}, {wave_s}")
    e(f"s_lshl_b32 s{st}, s{st}, 7")
    e(f"s_add_u32 s{st}, s{st}, {base + idx * 4:#x}")
    e(f"v_mov_b32 v{tmpv0}, {src}")
    e.vmem(f"buffer_store_dword v{tmpv0}, off, {sr(srdreg, 4)}, s{st}", "stamp")


def block(e, lines):
    def f():
        for l in lines:
            if callable(l):
                l()
            else:
                e(l)
    return f


PFSCHED = {k: [int(x) for x in g.split(",") if x] for k, g in enumerate(CFG["pfs"].split("/"))}
CFG_NTC = [int(c) for c in CFG["ntc"].split(",")]
KN = "gated_mix__ssm_conv_s5__glu_gated_glu__prompt_kernel"


def gen_k1():
    e = Asm()
    e.nofill = bool(CFG["x_nofill"])
    e.raw(f".globl {KN}\n.p2align 8\n.type {KN},@function\n{KN}:")
    e("s_cmp_ge_u32 s2, 256")
    e("s_cbranch_scc1 K1_END")
    e("s_load_dwordx16 s[8:23], s[0:1], 0")
    e("s_load_dwordx16 s[24:39], s[0:1], 64")
    e("s_load_dwordx2 s[40:41], s[0:1], 128")
    if CFG["stamp"]:
        e("s_memrealtime s[68:69]" if CFG["stamp"] in (3, 5) else "s_memtime s[68:69]")
    V_DUM, V_LANE, V_PFA, V_PFB = 0, 1, 2, 3
    V_DX0, V_DX1, V_DBM, V_DWBG, V_DWBU = 4, 5, 6, 7, 8
    V_DWA = 4
    V_SV = 0
    V_XA = 10
    V_ST = 14
    V_WA = 16
    V_WB = 17
    V_BA = 18
    V_EA, V_WDA = 22, 23
    T0, T1, T2, T3 = 116, 117, 118, 119
    V_I, V_POS = 120, 121
    X, J = S_T1, S_T2
    S_RBL, S_CBL = S_A2S, S_A2L
    if CFG["cpf"]:
        e("s_getpc_b64 s[76:77]")
        e("s_lshr_b32 s78, s2, 3")
        e("s_lshl_b32 s78, s78, 10")
        e(f"v_lshlrev_b32 v{T1}, 7, v0")
        e(f"v_add_u32 v{T1}, s78, v{T1}")
        e(f"v_min_u32 v{T1}, K1_END - {KN} - 64, v{T1}")
        e("v_cmp_gt_u32 vcc, 8, v0")
        e("s_and_saveexec_b64 s[78:79], vcc")
        e("s_cbranch_execz K1_NOCPF")
        e(f"global_load_dword v127, v{T1}, s[76:77]")
        e.label("K1_NOCPF")
        e("s_mov_b64 exec, s[78:79]")
    e(f"v_lshrrev_b32 v{T0}, 6, v0")
    e(f"v_and_b32 v{V_LANE}, 63, v0")
    e(f"s_and_b32 s{X}, s2, 7")
    e(f"v_readfirstlane_b32 s{S_W}, v{T0}")
    e(f"s_lshr_b32 s{J}, s2, 3")
    e(f"s_lshr_b32 s{S_RBL}, s{J}, 2")
    e(f"s_and_b32 s{S_CBL}, s{J}, 3")
    if CFG["map1"] == 84:
        e(f"s_lshr_b32 s{S_RB}, s{X}, 2")
        e(f"s_lshl_b32 s{S_RB}, s{S_RB}, 3")
        e(f"s_add_u32 s{S_RB}, s{S_RB}, s{S_RBL}")
        e(f"s_and_b32 s{S_CB}, s{X}, 3")
        e(f"s_lshl_b32 s{S_CB}, s{S_CB}, 2")
        e(f"s_add_u32 s{S_CB}, s{S_CB}, s{S_CBL}")
    else:
        e(f"s_lshr_b32 s{S_RB}, s{J}, 1")
        e(f"s_lshl_b32 s{S_CB}, s{X}, 1")
        e(f"s_and_b32 s{S_T0}, s{J}, 1")
        e(f"s_add_u32 s{S_CB}, s{S_CB}, s{S_T0}")
    e(f"s_add_u32 s{S_Q}, s{S_RBL}, s{S_CBL}")
    e(f"s_and_b32 s{S_Q}, s{S_Q}, {3 if CFG['rot2'] else 0}")
    e(f"s_and_b32 s{S_RW}, s{S_W}, 3")
    e(f"s_lshr_b32 s{S_CW}, s{S_W}, 2")
    e(f"v_lshrrev_b32 v{V_I}, 3, v{V_LANE}")
    e(f"v_and_b32 v{V_POS}, 7, v{V_LANE}")
    e(f"s_lshl_b32 s{S_T0}, s{S_RB}, 17")
    e(f"s_lshr_b32 s{S_T1}, s{S_W}, 1")
    e(f"s_lshl_b32 s{S_T1}, s{S_T1}, 15")
    e(f"s_add_u32 s{S_T0}, s{S_T0}, s{S_T1}")
    e(f"s_and_b32 s{S_T1}, s{S_W}, 1")
    e(f"s_lshl_b32 s{S_T2}, s{S_T1}, 13")
    e(f"s_add_u32 s{S_T0}, s{S_T0}, s{S_T2}")
    e(f"v_lshrrev_b32 v{T0}, 1, v{V_I}")
    e(f"v_xor_b32 v{T1}, v{V_POS}, v{T0}")
    e(f"v_lshlrev_b32 v{T1}, 4, v{T1}")
    e(f"v_lshrrev_b32 v{T2}, 2, v{V_I}")
    e(f"v_lshlrev_b32 v{T2}, 14, v{T2}")
    e(f"v_and_b32 v{T3}, 3, v{V_I}")
    e(f"v_lshl_add_u32 v{T2}, v{T3}, 10, v{T2}")
    e(f"v_add3_u32 v{V_DX0}, v{T2}, v{T1}, s{S_T0}")
    e(f"v_xor_b32 v{V_DX1}, 64, v{V_DX0}")
    e(f"v_add_u32 v{V_DX1}, 0x1000, v{V_DX1}")
    e(f"s_lshl_b32 s{S_T2}, s{S_T1}, 6")
    e(f"v_xor_b32 v{T1}, s{S_T2}, v{T1}")
    e(f"s_lshl_b32 s{S_T0}, s{S_CB}, 15")
    e(f"s_lshl_b32 s{S_T2}, s{S_RW}, 13")
    e(f"s_add_u32 s{S_T0}, s{S_T0}, s{S_T2}")
    e(f"v_lshl_add_u32 v{V_DBM}, v{V_I}, 10, v{T1}")
    e(f"v_add_u32 v{V_DBM}, s{S_T0}, v{V_DBM}")
    e(f"v_lshrrev_b32 v{T0}, 1, v{V_POS}")
    e(f"v_bfe_u32 v{T1}, v{V_I}, 1, 1")
    e(f"v_xor_b32 v{T0}, v{T0}, v{T1}")
    e(f"v_lshlrev_b32 v{T0}, 5, v{T0}")
    e(f"v_and_b32 v{T1}, 1, v{V_POS}")
    e(f"v_lshl_add_u32 v{T0}, v{T1}, 4, v{T0}")
    e(f"v_mul_u32_u24 v{T1}, 3584, v{V_I}")
    e(f"s_mul_i32 s{S_T0}, s{S_W}, {8 * 3584}")
    e(f"s_lshl_b32 s{S_T1}, s{S_CB}, 7")
    e(f"s_add_u32 s{S_T0}, s{S_T0}, s{S_T1}")
    e(f"v_add3_u32 v{V_DWBG}, v{T0}, v{T1}, s{S_T0}")
    e(f"v_xor_b32 v{V_DWBU}, 64, v{V_DWBG}")
    e(f"s_lshl_b32 s{S_W2O}, s{S_CB}, {1 if CFG['map1'] == 84 else 2}")
    e(f"s_add_u32 s{S_W2O}, s{S_W2O}, s{S_RB}")
    e(f"s_and_b32 s{S_W2O}, s{S_W2O}, {CFG['rot']}")
    e(f"s_lshl_b32 s{S_MX}, s{S_W}, 11")
    e(f"s_lshl_b32 s{S_MBM}, s{S_W}, 10")
    READ_ADDR = len(e.lines)
    for d, nb in ((SX, 2048 * 1024), (SBM, 512 * 1024), (SWG, 512 * 3584), (SWU, 512 * 3584)):
        e(f"s_mov_b32 s{d + 2}, {nb:#x}")
        e(f"s_mov_b32 s{d + 3}, 0x00020000")
    e("s_waitcnt lgkmcnt(0)")
    def pst(r):
        if CFG["stamp"] == 4:
            e(f"s_memtime s[{r}:{r + 1}]")
    pst(76)
    PFW = 7
    V_PFS = 15
    pf_uid = [0]

    def pf_item(C):
        def f():
            if not CFG["pf"]:
                return
            if C == 8:
                pf_setup_b()
            if C == 12:
                pf_setup_w()
            if C in (16, 17):
                pf_setup_c(P_CRE if C == 16 else P_CIM)
            e(f"s_mov_b64 exec, {sr(S_PFM, 2)}")
            nt = " nt" if ("w" if C < 12 else "2") in CFG["nt"] else ""
            e.vmem(f"global_load_dword v{V_DUM}, {vr(V_PFA, 2)}, off{nt}", "pf")
            e("s_mov_b64 exec, -1")
            e(f"v_add_co_u32 v{V_PFA}, vcc, v{V_PFS}, v{V_PFA}")
            e("s_nop 1")
            e(f"v_addc_co_u32 v{V_PFA + 1}, vcc, 0, v{V_PFA + 1}, vcc")
        f.is_dma = True
        f.chunk = 99
        return f

    def pf_sel(lo_lane, p, tl, th):
        e(f"v_cmp_le_u32 vcc, {lo_lane}, v{V_LANE}")
        e(f"v_mov_b32 v{tl}, s{p}")
        e(f"v_mov_b32 v{th}, s{p + 1}")
        e(f"v_cndmask_b32 v{V_PFA}, v{V_PFA}, v{tl}, vcc")
        e(f"v_cndmask_b32 v{V_PFA + 1}, v{V_PFA + 1}, v{th}, vcc")

    def pf_setup_a():
        a, b, c = T0, T1, T2
        e(f"v_mov_b32 v{V_PFA}, s{P_X}")
        e(f"v_mov_b32 v{V_PFA + 1}, s{P_X + 1}")
        pf_sel(32, P_BRE, a, b)
        pf_sel(36, P_BIM, a, b)
        pf_sel(40, P_WG, a, b)
        pf_sel(48, P_WU, a, b)
        e(f"s_lshl_b32 s{S_T0}, s{S_RB}, 7")
        e(f"s_lshl_b32 s{S_T1}, s{S_CBL}, 5")
        e(f"s_add_u32 s{S_T0}, s{S_T0}, s{S_T1}")
        e(f"v_add_u32 v{a}, s{S_T0}, v{V_LANE}")
        e(f"v_lshlrev_b32 v{a}, 10, v{a}")
        e(f"s_lshl_b32 s{S_T0}, s{S_CB}, 5")
        e(f"s_lshl_b32 s{S_T1}, s{S_RBL}, 2")
        e(f"s_add_u32 s{S_T0}, s{S_T0}, s{S_T1}")
        e(f"v_and_b32 v{b}, 3, v{V_LANE}")
        e(f"v_add_u32 v{b}, s{S_T0}, v{b}")
        e(f"v_cmp_le_u32 vcc, 32, v{V_LANE}")
        e(f"v_lshlrev_b32 v{b}, 10, v{b}")
        e(f"s_mul_i32 s{S_T0}, s{S_RBL}, {8 * 3584}")
        e(f"v_cndmask_b32 v{a}, v{a}, v{b}, vcc")
        e(f"s_lshl_b32 s{S_T1}, s{S_CB}, 7")
        e(f"s_add_u32 s{S_T0}, s{S_T0}, s{S_T1}")
        e(f"v_and_b32 v{b}, 7, v{V_LANE}")
        e(f"v_mul_u32_u24 v{b}, 3584, v{b}")
        e(f"v_cmp_le_u32 vcc, 40, v{V_LANE}")
        e(f"v_add_u32 v{b}, s{S_T0}, v{b}")
        e(f"v_mov_b32 v{V_PFS}, 128")
        e(f"v_mov_b32 v{c}, {64 * 3584}")
        e(f"v_cndmask_b32 v{a}, v{a}, v{b}, vcc")
        e(f"v_cndmask_b32 v{V_PFS}, v{V_PFS}, v{c}, vcc")
        e(f"s_add_u32 s{S_T0}, s{S_RW}, {CFG['pf0']}")
        e(f"v_mad_u32_u24 v{a}, v{V_PFS}, s{S_T0}, v{a}")
        e(f"v_add_co_u32 v{V_PFA}, vcc, v{a}, v{V_PFA}")
        e("s_nop 1")
        e(f"v_addc_co_u32 v{V_PFA + 1}, vcc, 0, v{V_PFA + 1}, vcc")

    def pf_point(p, a):
        e(f"v_mov_b32 v{V_PFA + 1}, s{p + 1}")
        e(f"v_add_co_u32 v{V_PFA}, vcc, s{p}, v{a}")
        e("s_nop 1")
        e(f"v_addc_co_u32 v{V_PFA + 1}, vcc, 0, v{V_PFA + 1}, vcc")

    def pf_setup_w():
        a = 9
        e(f"v_min_u32 v{a}, 55, v{V_LANE}")
        e(f"s_lshr_b32 s{S_T0}, s2, 5")
        e(f"s_mul_i32 s{S_T0}, s{S_T0}, {224 * 1024}")
        e(f"s_lshl_b32 s{S_T1}, s{S_NP}, 7")
        e(f"s_add_u32 s{S_T0}, s{S_T0}, s{S_T1}")
        e(f"v_lshl_add_u32 v{a}, v{a}, 10, s{S_T0}")
        e(f"v_mov_b32 v{V_PFS}, {56 * 1024}")
        pf_point(P_WD, a)

    def pf_setup_c(p):
        a = 9
        e(f"s_lshr_b32 s{S_T0}, s2, 5")
        e(f"s_lshl_b32 s{S_T0}, s{S_T0}, 13")
        e(f"s_lshl_b32 s{S_T1}, s{S_NP}, 16")
        e(f"s_add_u32 s{S_T0}, s{S_T0}, s{S_T1}")
        e(f"v_lshl_add_u32 v{a}, v{V_LANE}, 7, s{S_T0}")
        pf_point(p, a)

    def pf_setup_b():
        a, b = 20, 21
        e(f"v_mov_b32 v{V_PFA}, s{P_WG}")
        e(f"v_mov_b32 v{V_PFA + 1}, s{P_WG + 1}")
        pf_sel(32, P_WU, a, b)
        e(f"v_bfe_u32 v{a}, v{V_LANE}, 1, 4")
        e(f"v_mul_u32_u24 v{a}, 3584, v{a}")
        e(f"v_and_b32 v{b}, 1, v{V_LANE}")
        e(f"v_mul_u32_u24 v{b}, 80, v{b}")
        e(f"s_and_b32 s{S_T0}, s{S_RB}, 7")
        e(f"s_mul_i32 s{S_T0}, s{S_T0}, {16 * 3584}")
        e(f"s_mul_i32 s{S_T1}, s{S_CB}, 96")
        e(f"s_add_u32 s{S_T0}, s{S_T0}, s{S_T1}")
        e(f"s_add_u32 s{S_T0}, s{S_T0}, 2048")
        e(f"v_add3_u32 v{a}, v{a}, v{b}, s{S_T0}")
        e(f"v_mov_b32 v{V_PFS}, {128 * 3584}")
        e(f"v_add_co_u32 v{V_PFA}, vcc, v{a}, v{V_PFA}")
        e("s_nop 1")
        e(f"v_addc_co_u32 v{V_PFA + 1}, vcc, 0, v{V_PFA + 1}, vcc")

    e(f"s_mov_b32 s{SX}, s{P_X}")
    e(f"s_mov_b32 s{SX + 1}, s{P_X + 1}")
    e(f"s_cmp_eq_u32 s{S_CW}, 0")
    e(f"s_cselect_b32 s{SBM}, s{P_BRE}, s{P_BIM}")
    e(f"s_cselect_b32 s{SBM + 1}, s{P_BRE + 1}, s{P_BIM + 1}")
    for d, p in ((SWG, P_WG), (SWU, P_WU)):
        e(f"s_mov_b32 s{d}, s{p}")
        e(f"s_mov_b32 s{d + 1}, s{p + 1}")

    S_ROT = S_W2O
    S_BX = S_GROW

    def dma_list(C, both=False):
        slot = (C % 4) * SLOT
        out = []

        def mk(mbase, moff, voff, srd_, base, add, pre=()):
            def f():
                for p in pre:
                    e(p)
                e(f"s_add_u32 m0, s{mbase}, {slot + moff}")
                e(f"s_add_u32 s{S_SO}, s{base}, {add}")
                if CFG["x_nodma"] and C >= 2:
                    return
                nt = " nt" if (("x" if srd_ == SX else "w") in CFG["nt"] and C in CFG_NTC) else ""
                e.vmem(f"buffer_load_dwordx4 v{voff}, {sr(srd_, 4)}, s{S_SO} offen{nt} lds", ("dma", C))
            f.is_dma = True
            f.chunk = C
            return f
        if C < 8:
            pre = [f"s_add_u32 s{S_SO2}, s{S_ROT}, {C}", f"s_and_b32 s{S_SO2}, s{S_SO2}, 7",
                   f"s_lshl_b32 s{S_BX}, s{S_SO2}, 7", f"s_mul_i32 s{S_SO2}, s{S_SO2}, {64 * 3584}"]
            for hf in range(2 if both else 1):
                out.append(mk(S_MX, 8192 * hf, V_DX0, SX, S_BX, 65536 * hf, pre if hf == 0 else ()))
                out.append(mk(S_MBM, 24576 + 4096 * hf, V_DWBG, SWG, S_SO2, 32 * hf * 3584))
                out.append(mk(S_MX, 8192 * hf + 1024, V_DX1, SX, S_BX, 65536 * hf))
                out.append(mk(S_MBM, 32768 + 4096 * hf, V_DWBU, SWU, S_SO2, 32 * hf * 3584))
                out.append(mk(S_MBM, 16384 + 4096 * hf, V_DBM, SBI if hf else SBM, S_BX, 0))
        else:
            pre = [f"s_lshr_b32 s{S_SO2}, s{S_RW}, 1", f"s_add_u32 s{S_SO2}, s{S_SO2}, s{S_ROT}",
                   f"s_add_u32 s{S_SO2}, s{S_SO2}, {2 * (C - 8)}", f"s_and_b32 s{S_SO2}, s{S_SO2}, 7",
                   f"s_mul_i32 s{S_SO2}, s{S_SO2}, {64 * 3584}"]
            for m in range(3):
                out.append(mk(S_MWA, 1024 * m, V_DWA + m, SWG, S_SO2, 0, pre if m == 0 else ()))
                out.append(mk(S_MWA, WAU + 1024 * m, V_DWA + m, SWU, S_SO2, 0))
        return out

    if CFG["pf"] and CFG["pf0"] == 0:
        pf_setup_a()
        e(f"s_cmp_eq_u32 s{S_CW}, 0")
        e("s_cselect_b32 exec_hi, 0, -1")
        e("s_cselect_b32 exec_lo, -1, 0")
        e.vmem(f"global_load_dword v{V_DUM}, {vr(V_PFA, 2)}, off", "pf")
        e("s_mov_b64 exec, -1")
        pst(78)
        e("s_barrier")
    pst(80)
    for f in dma_list(0):
        f()
    pst(82)
    e(f"v_and_b32 v{T0}, 31, v{V_LANE}")
    e(f"v_lshrrev_b32 v{T1}, 5, v{V_LANE}")
    e(f"v_bfe_u32 v{T2}, v{V_LANE}, 1, 3")
    e(f"v_xor_b32 v{T2}, v{T2}, v{T1}")
    e(f"v_lshlrev_b32 v{T2}, 4, v{T2}")
    e(f"v_lshl_add_u32 v{T2}, v{T0}, 7, v{T2}")
    e(f"s_lshl_b32 s{S_T0}, s{S_RW}, 12")
    e(f"v_add_u32 v{V_XA}, s{S_T0}, v{T2}")
    for s in range(1, 4):
        e(f"v_xor_b32 v{V_XA + s}, {32 * s}, v{V_XA}")
    e(f"v_lshlrev_b32 v{V_ST}, 4, v{V_LANE}")
    e(f"v_bfe_u32 v{T0}, v{V_LANE}, 2, 2")
    e(f"v_lshl_add_u32 v{T0}, v{T1}, 3, v{T0}")
    e(f"v_bfe_u32 v{T1}, v{V_LANE}, 4, 1")
    e(f"v_and_b32 v{T3}, 3, v{V_LANE}")
    e(f"v_lshlrev_b32 v{T3}, 3, v{T3}")
    e(f"v_lshlrev_b32 v{V_WB}, 13, v{T1}")
    e(f"v_lshl_add_u32 v{V_WB}, v{T0}, 7, v{V_WB}")
    e(f"v_bfe_u32 v{T2}, v{V_LANE}, 3, 2")
    e(f"v_lshl_add_u32 v{V_WB}, v{T2}, 5, v{V_WB}")
    e(f"v_add_u32 v{V_WB}, v{V_WB}, v{T3}")
    e(f"v_add_u32 v{V_WB}, 24576, v{V_WB}")
    e(f"v_mul_u32_u24 v{V_WA}, {WAU}, v{T1}")
    e(f"v_mul_u32_u24 v{T2}, 96, v{T0}")
    e(f"v_add3_u32 v{V_WA}, v{V_WA}, v{T2}, v{T3}")
    if CFG["stamp"]:
        srd(e, SWS, P_WS, WS_BYTES)
    stamp(e, 5, f"s{S_W}", V_SV, SWS, src="s68")
    stamp(e, 20, f"s{S_W}", V_SV, SWS, src="s68")
    e("s_barrier")
    e(f"s_cmp_eq_u32 s{S_CW}, 0")
    e("s_cbranch_scc0 K1_ROLE1")
    pro_vm = list(e.vm)

    def late_setup():
        return [block(e, [
            f"s_and_b32 s{S_T0}, s2, 7",
            f"s_lshr_b32 s{S_MP}, s{S_T0}, 2",
            f"s_lshl_b32 s{S_MP}, s{S_MP}, 1",
            f"s_and_b32 s{S_T1}, s{S_T0}, 1",
            f"s_add_u32 s{S_MP}, s{S_MP}, s{S_T1}",
            f"s_lshl_b32 s{S_MP}, s{S_MP}, 3",
            f"s_add_u32 s{S_MP}, s{S_MP}, s{S_RBL}",
            f"s_bfe_u32 s{S_NP}, s{S_T0}, 0x10001",
            f"s_lshl_b32 s{S_NP}, s{S_NP}, 2",
            f"s_add_u32 s{S_NP}, s{S_NP}, s{S_CBL}",
            f"s_mul_i32 s{S_MWA}, s{S_RW}, 3072",
            lambda: srd(e, SWS, P_WS, WS_BYTES)]),
            block(e, [
            f"s_mov_b32 s{S_NL2E}, {NLOG2E:#x}",
            f"s_lshl_b32 s{S_T0}, s{S_RB}, 1",
            f"s_lshr_b32 s{S_T1}, s{S_RW}, 1",
            f"s_add_u32 s{S_T0}, s{S_T0}, s{S_T1}",
            f"s_mul_i32 s{S_T0}, s{S_T0}, {KS * 2048}",
            f"s_and_b32 s{S_T1}, s{S_RW}, 1",
            f"s_lshl_b32 s{S_T1}, s{S_T1}, 10",
            f"s_add_u32 s{S_T0}, s{S_T0}, s{S_T1}",
            f"s_lshl_b32 s{S_T1}, s{S_CB}, 13",
            f"s_add_u32 s{S_A2S}, s{S_T0}, s{S_T1}",
            f"s_add_u32 s{S_A2E}, s{S_A2S}, {64 * 2048}",
            f"s_mul_i32 s{S_T1}, s{S_CB}, {3 * 2048}",
            f"s_add_u32 s{S_A2L}, s{S_T0}, s{S_T1}",
            f"s_add_u32 s{S_A2L}, s{S_A2L}, {128 * 2048}",
            lambda: srd(e, SDBG, P_DBG, 256)])]

    def wa_voffsets(t0, t1, t2):
        it = [block(e, [f"s_mul_i32 s{S_SLT}, s{S_CB}, 96", f"s_add_u32 s{S_SLT}, s{S_SLT}, 2048",
                        f"s_and_b32 s{S_T0}, s{S_RW}, 1",
                        f"s_mul_i32 s{S_T0}, s{S_T0}, {32 * 3584}", f"s_add_u32 s{S_SLT}, s{S_SLT}, s{S_T0}"])]
        for m in range(3):
            it += [f"v_add_u32 v{t0}, {64 * m}, v{V_LANE}",
                   f"v_mul_u32_u24 v{t1}, 43691, v{t0}",
                   f"v_lshrrev_b32 v{t1}, 18, v{t1}",
                   f"v_mul_u32_u24 v{t2}, 6, v{t1}",
                   f"v_sub_u32 v{t2}, v{t0}, v{t2}",
                   f"v_mul_u32_u24 v{t1}, 3584, v{t1}",
                   f"v_lshl_add_u32 v{t1}, v{t2}, 4, v{t1}",
                   f"v_add_u32 v{V_DWA + m}, s{S_SLT}, v{t1}"]
        return [(lambda l=l: e(l)) if isinstance(l, str) else l for l in it]

    def glu_epilogue(acc, jt):
        it = []
        if CFG["pk"]:
            for i in range(0, 8, 2):
                it.append(f"v_pk_mul_f32 {vr(acc + i, 2)}, {vr(acc + i, 2)}, {sr(S_NL2E, 2)} op_sel_hi:[1,0]")
            for i in range(8):
                it.append(f"v_exp_f32 v{acc + i}, v{acc + i}")
            for i in range(0, 8, 2):
                it.append(f"v_pk_add_f32 {vr(acc + i, 2)}, {vr(acc + i, 2)}, 1.0 op_sel_hi:[1,0]")
            for i in range(8):
                it.append(f"v_rcp_f32 v{acc + i}, v{acc + i}")
            for i in range(0, 8, 2):
                it.append(f"v_pk_mul_f32 {vr(acc + i, 2)}, {vr(acc + i, 2)}, {vr(acc + 8 + i, 2)}")
        for i in range(0 if not CFG["pk"] else 8, 8):
            it.append(f"v_mul_f32 v{acc + i}, s{S_NL2E}, v{acc + i}")
        for i in range(0 if not CFG["pk"] else 8, 8):
            it.append(f"v_exp_f32 v{acc + i}, v{acc + i}")
        for i in range(0 if not CFG["pk"] else 8, 8):
            it.append(f"v_add_f32 v{acc + i}, 1.0, v{acc + i}")
        for i in range(0 if not CFG["pk"] else 8, 8):
            it.append(f"v_rcp_f32 v{acc + i}, v{acc + i}")
        for i in range(0 if not CFG["pk"] else 8, 8):
            it.append(f"v_mul_f32 v{acc + i}, v{acc + i}, v{acc + 8 + i}")
        for i in range(4):
            it.append(f"v_cvt_pk_bf16_f32 v{acc + 8 + i}, v{acc + 2 * i}, v{acc + 2 * i + 1}")
        it.append(block(e, [f"s_add_u32 s{S_SO}, s{S_A2L if jt < 3 else S_A2E}, {(jt if jt < 3 else jt - 3) * 2048}", lambda: e.vmem(
            f"buffer_store_dwordx4 {vr(acc + 8, 4)}, v{V_ST}, {sr(SWS, 4)}, s{S_SO} offen {CFG['st_flag']}", "st" if jt < 3 else "ste")]))
        return it

    steps = [("A", c, s) for c in range(8) for s in range(4)] + [("B", c, s) for c in range(4) for s in range(8)]

    def qdma(items):
        i = 0
        while i < len(e.fill_q) and getattr(e.fill_q[i], "is_dma", False):
            i += 1
        e.fill_q[i:i] = items

    def flush_dma(C):
        while any(getattr(f, "is_dma", False) and f.chunk <= C for f in e.fill_q):
            e.fill(1)

    def chunk_of(st):
        return st[1] if st[0] == "A" else 8 + st[1]

    def main_loop(role, hooks, nfillA, nfillB, wt):
        AH = CFG["ahead"]
        pst(90)
        e.wait_vm(("dma", 0))
        if CFG["stamp"] == 4:
            e("s_memtime s[0:1]")
            e("s_waitcnt lgkmcnt(0)")
            for k_, r_ in enumerate((76, 78, 80, 82, 88, 90, 0)):
                stamp(e, 8 + k_, f"s{S_W}", V_SV, SWS, src=f"s{r_}")
        e("s_barrier")
        stamp(e, 1, f"s{S_W}", V_SV, SWS)
        for C in range(CFG["pro"], AH + 1):
            if CFG["split"]:
                e.fill_q.extend(dma_list(C))
            elif role.dma:
                e.fill_q.extend(dma_list(C, True))
        if role.pf:
            e.fill_q.extend(pf_item(c_) for c_ in PFSCHED.get(0, []))
        for n2 in (0, 1):
            for rd in role.reads(n2):
                rd()
        for n, st in enumerate(steps):
            n2 = n + 2
            rds = []
            if n2 < len(steps):
                C = chunk_of(steps[n2])
                if steps[n2][2] == 0:
                    if ("pre", C) in hooks:
                        hooks[("pre", C)]()
                    flush_dma(C)
                    if AH == 3:
                        e.wait_lg_all()
                    if C in (10, 11):
                        stamp(e, 27 + C - 10, f"s{S_W}", V_SV, SWS)
                    e.wait_vm(("dma", C))
                    if C in (10, 11):
                        stamp(e, 29 + C - 10, f"s{S_W}", V_SV, SWS)
                    if not CFG["x_nobar"]:
                        e("s_barrier")
                    stamp(e, 8 + C, f"s{S_W}", V_SV, SWS)
                    items = []
                    if C + AH == 8 and role.dma:
                        flush_dma(7)
                        w = wa_voffsets(*wt)
                        for f in w:
                            f.is_dma = True
                            f.chunk = 8
                        items += w
                    if C + AH < 8 and CFG["split"]:
                        items += dma_list(C + AH)
                    elif C + AH <= 11 and role.dma:
                        items += dma_list(C + AH, True)
                    if role.pf:
                        items += [pf_item(c_) for c_ in PFSCHED.get(C, [])]
                    qdma(items)
                    if ("post", C) in hooks:
                        hooks[("post", C)]()
                rds = role.reads(n2)
            mfs = role.mfmas(n)
            e.wait_lg(("rd", n))
            nf = nfillA if st[0] == "A" else nfillB
            for g, m in enumerate(mfs):
                m()
                lo = g * len(rds) // len(mfs)
                hi = (g + 1) * len(rds) // len(mfs)
                for rd in rds[lo:hi]:
                    if not CFG["x_noread"]:
                        rd()
                e.fill(nf)
            if ("step", n) in hooks:
                hooks[("step", n)]()

    def toggle(C, regsA, regsB):
        if C in (2, 6):
            for r_ in regsA:
                e(f"v_add_u32 v{r_}, {PAIR}, v{r_}")
        elif C == 4:
            for r_ in regsA:
                e(f"v_subrev_u32 v{r_}, {PAIR}, v{r_}")
        elif C == 10:
            for r_ in regsB:
                e(f"v_add_u32 v{r_}, {PAIR}, v{r_}")

    def mf(acc, a, b, first):
        c = "0" if first else vr(acc, 16)
        if CFG["x_nomfma"]:
            e("s_nop 0")
            return
        e(f"v_mfma_f32_32x32x16_bf16 {vr(acc, 16)}, {a}, {b}, {c}")

    def rd_wb(dst, vaddr, lo, s, n):
        for u in range(2):
            e.ds(f"ds_read_b64_tr_b16 {vr(dst + 2 * u, 2)}, v{vaddr} offset:{lo + (16 * s + 4 * u) * 128}", ("rd", n))

    def rd_wa(dst, j, lo, s, n):
        for u in range(2):
            e.ds(f"ds_read_b64_tr_b16 {vr(dst + 2 * u, 2)}, v{V_WA} offset:{lo + (16 * s + 4 * u) * 96 + 32 * j}", ("rd", n))

    uid = [0]

    def lab(n):
        uid[0] += 1
        return f"K1_{n}{uid[0]}"

    def tag_load(vt):
        def f():
            e.vmem(f"buffer_load_dwordx2 {vr(vt, 2)}, off, {sr(SDBG, 4)}, 0 sc1", "tag")
        return f

    def tag_check(vt):
        e.wait_vm("tag")
        a, b = lab("TAGCHK"), lab("TAGOK")
        e(f"s_mov_b32 s{S_SO}, 0x40000")
        e.label(a)
        e(f"v_readfirstlane_b32 s{S_TAG}, v{vt}")
        e(f"v_readfirstlane_b32 s{S_TAG + 1}, v{vt + 1}")
        e(f"s_sub_u32 s{S_SO}, s{S_SO}, 1")
        e(f"s_cmp_eq_u32 s{S_SO}, 0")
        e(f"s_cbranch_scc1 {b}")
        e(f"s_cmp_lg_u32 s{S_TAG}, 0")
        e(f"s_cbranch_scc1 {b}")
        e("s_sleep 1")
        e(f"buffer_load_dwordx2 {vr(vt, 2)}, off, {sr(SDBG, 4)}, 0 sc1")
        e("s_waitcnt vmcnt(0)")
        e(f"s_branch {a}")
        e.label(b)

    def flag_store(soff_reg, vt):
        e(f"v_mov_b32 v{vt}, s{S_TAG}")
        e(f"v_mov_b32 v{vt + 1}, s{S_TAG + 1}")
        e("s_mov_b64 exec, 1")
        e(f"buffer_store_dwordx2 {vr(vt, 2)}, off, {sr(SWS, 4)}, s{soff_reg} sc1")
        e("s_mov_b64 exec, -1")

    def flag_load(vd, va, tag):
        e.vmem(f"buffer_load_dwordx2 {vr(vd, 2)}, v{va}, {sr(SWS, 4)}, 0 offen sc1", tag)

    def flag_check(vd, va, tag):
        e.wait_vm(tag)
        a, b = lab("FCHK"), lab("FOK")
        e(f"s_mov_b32 s{S_SO}, 0x40000")
        e.label(a)
        e(f"v_cmp_ne_u64 s[0:1], {vr(vd, 2)}, {sr(S_TAG, 2)}")
        e(f"s_sub_u32 s{S_SO}, s{S_SO}, 1")
        e(f"s_cmp_eq_u32 s{S_SO}, 0")
        e(f"s_cbranch_scc1 {b}")
        e("s_cmp_eq_u64 s[0:1], 0")
        e(f"s_cbranch_scc1 {b}")
        e("s_sleep 1")
        e(f"buffer_load_dwordx2 {vr(vd, 2)}, v{va}, {sr(SWS, 4)}, 0 offen sc1")
        e("s_waitcnt vmcnt(0)")
        e(f"s_branch {a}")
        e.label(b)

    def cnt_spin(vt):
        a_ = lab("CNT")
        e(f"v_mov_b32 v{vt}, {CNT_ADDR}")
        e.label(a_)
        e(f"ds_read_b32 v{vt + 1}, v{vt}")
        e("s_waitcnt lgkmcnt(0)")
        e.lg = []
        e(f"v_readfirstlane_b32 s{S_T0}, v{vt + 1}")
        e(f"s_cmp_lt_u32 s{S_T0}, 8")
        e(f"s_cbranch_scc1 {a_}")

    def order(G):
        if CFG["ord"] == 1:
            return [(g, 0) for g in range(G)] + [(g, c) for c in (1, 2, 3) for g in range(G)]
        if CFG["ord"] == 2:
            return [(g, c) for g in range(G) for c in range(4)]
        o = [(0, 0)]
        for g in range(G):
            if g + 1 < G:
                o.append((g + 1, 0))
            o += [(g, c) for c in (1, 2, 3)]
        return o

    def step_idx(dst, base, g, c):
        if c:
            e(f"s_add_u32 s{dst}, s{S_Q}, {c}")
            e(f"s_and_b32 s{dst}, s{dst}, 3")
            e(f"s_add_u32 s{dst}, s{dst}, {base + 4 * g}")
        else:
            e(f"s_add_u32 s{dst}, s{S_Q}, {base + 4 * g}")

    def w2_base(p):
        return (8 * (p % 16) + 32) % 128

    def w2_ready_step(p):
        return 32 + w2_base(p) // 4 + 1

    def p2_setup_common():
        e(f"s_mul_i32 s{S_T1}, s{S_MP}, {KS * 2048}")
        e(f"s_add_u32 s{SA2}, s{P_WS}, s{S_T1}")
        e(f"s_addc_u32 s{SA2 + 1}, s{P_WS + 1}, 0")
        e(f"s_mov_b32 s{SA2 + 2}, {KS * 2048:#x}")
        srd(e, SOUT, P_OUT, 2048 * 2048)

    def chain(hooks, key, fn):
        prev = hooks.get(key)
        hooks[key] = (lambda: (prev(), fn())) if prev else fn

    RA = CFG["ra"]
    RING, ACC = 24, 64
    RAV = [RA]
    assert RING + 8 * RA <= ACC
    V_XX, V_DD, V_G, V_OO, V_GO, V_LW = 2, 6, 10, 12, 13, 15

    def p2_flag_request(which, vf, tag):
        e(f"s_lshr_b32 s{S_T0}, s{S_MP}, 1")
        e(f"s_lshl_b32 s{S_T0}, s{S_T0}, 7")
        e(f"s_add_u32 s{S_T0}, s{S_T0}, {FX_OFF + 2048 * which:#x}")
        e(f"v_and_b32 v{vf + 3}, 15, v{V_LANE}")
        e(f"v_lshl_add_u32 v{vf + 2}, v{vf + 3}, 3, s{S_T0}")
        flag_load(vf, vf + 2, tag)

    def p2_epi_setup():
        TA, TB = ACC + 4, ACC + 5
        e(f"v_bfe_u32 v{TA}, v{V_LANE}, 2, 1")
        e(f"v_lshlrev_b32 v{V_GO}, 4, v{TA}")
        e(f"v_bfe_u32 v{TA}, v{V_LANE}, 3, 2")
        e(f"v_lshl_add_u32 v{V_GO}, v{TA}, 2, v{V_GO}")
        e(f"v_and_b32 v{TA}, 3, v{V_LANE}")
        e(f"v_add_u32 v{V_GO}, v{V_GO}, v{TA}")
        e(f"s_lshl_b32 s{S_T0}, s{S_MP}, 6")
        e(f"s_lshr_b32 s{S_T1}, s{S_RW}, 1")
        e(f"s_lshl_b32 s{S_T1}, s{S_T1}, 5")
        e(f"s_add_u32 s{S_T0}, s{S_T0}, s{S_T1}")
        e(f"v_add_u32 v{V_GO}, s{S_T0}, v{V_GO}")
        e(f"s_lshl_b32 s{S_T0}, s{S_NP}, 6")
        e(f"s_and_b32 s{S_T1}, s{S_RW}, 1")
        e(f"s_lshl_b32 s{S_T1}, s{S_T1}, 5")
        e(f"s_add_u32 s{S_T0}, s{S_T0}, s{S_T1}")
        e(f"s_lshl_b32 s{S_T1}, s{S_CW}, 4")
        e(f"s_add_u32 s{S_T0}, s{S_T0}, s{S_T1}")
        e(f"v_lshrrev_b32 v{TA}, 5, v{V_LANE}")
        e(f"v_lshlrev_b32 v{TA}, 2, v{TA}")
        e(f"v_add_u32 v{TA}, s{S_T0}, v{TA}")
        e(f"v_lshlrev_b32 v{TB}, 1, v{TA}")
        e(f"v_lshl_add_u32 v{TA}, v{V_GO}, 10, v{TB}")
        e(f"v_lshlrev_b32 v{V_OO}, 1, v{TA}")
        e(f"v_lshlrev_b32 v{V_GO}, 3, v{V_GO}")
        srd(e, ST2, P_DSK, 1024)
        for a in range(2):
            e.vmem(f"buffer_load_dwordx2 {vr(V_XX + 2 * a, 2)}, v{TA}, {sr(SX, 4)}, 0 offen offset:{16 * a}", "ep")
            e.vmem(f"buffer_load_dwordx2 {vr(V_DD + 2 * a, 2)}, v{TB}, {sr(ST2, 4)}, 0 offen offset:{16 * a}", "ep")
        if CFG["ew"]:
            e(f"s_mul_i32 s{S_T0}, s{S_RW}, {SLOT}")
            e(f"s_xor_b32 s{S_T1}, s{S_CW}, 1")
            e(f"s_lshl_b32 s{S_T1}, s{S_T1}, 14")
            e(f"s_add_u32 s{S_T0}, s{S_T0}, s{S_T1}")
        else:
            e(f"s_lshl_b32 s{S_T0}, s{S_W}, 14")
        e(f"v_add_u32 v{V_LW}, s{S_T0}, v{V_ST}")

    def xd_items():
        xd = [lambda: e.wait_vm("ep")]
        for d in range(4):
            xr, dr = V_XX + d, V_DD + d
            xd += [f"v_lshlrev_b32 v0, 16, v{xr}",
                   f"v_and_b32 v{xr}, 0xffff0000, v{xr}",
                   f"v_lshlrev_b32 v{V_G}, 16, v{dr}",
                   f"v_and_b32 v{dr}, 0xffff0000, v{dr}",
                   f"v_mul_f32 v0, v0, v{V_G}",
                   f"v_mul_f32 v{xr}, v{xr}, v{dr}",
                   f"v_cvt_pk_bf16_f32 v{xr}, v0, v{xr}",
                   f"v_and_b32 v{dr}, 0xffff0000, v{xr}",
                   f"v_lshlrev_b32 v{xr}, 16, v{xr}"]
        return xd

    def a_load(p, seq):
        base_s, idx = seq[p]
        b = RING + 8 * (p % RAV[0])
        if idx % 2 == 0:
            e(f"s_add_u32 s{S_SLT}, s{base_s}, {idx * 2048}")
        o = (idx % 2) * 2048
        e.vmem(f"buffer_load_dwordx4 {vr(b, 4)}, v{V_ST}, {sr(SA2, 4)}, s{S_SLT} offen offset:{o} sc1", ("a", p))
        e.vmem(f"buffer_load_dwordx4 {vr(b + 4, 4)}, v{V_ST}, {sr(SA2, 4)}, s{S_SLT} offen offset:{o + 1024} sc1", ("a", p))

    def p2_mfmas(p):
        b = RING + 8 * (p % RAV[0])
        wb = w2_base(p)
        e.wait_vm(("a", p))
        for tt in range(2):
            for nt in range(2):
                acc = ACC + 16 * (2 * tt + nt)
                c = "0" if p == 0 else vr(acc, 16)
                e(f"v_mfma_f32_32x32x16_bf16 {vr(acc, 16)}, {ar(wb + 4 * nt, 4)}, {vr(b + 4 * tt, 4)}, {c}")
                e.fill(2)

    def finish_phase1(vt):
        e.wait_vm("st")
        a = lab("NOL")
        e(f"v_mov_b32 v{vt}, {CNT_ADDR}")
        e(f"v_mov_b32 v{vt + 1}, 1")
        e("s_mov_b64 exec, 1")
        e(f"ds_add_rtn_u32 v{vt + 1}, v{vt}, v{vt + 1}")
        e("s_mov_b64 exec, -1")
        e(f"s_lshl_b32 s{S_T0}, s{S_RB}, 7")
        e(f"s_lshl_b32 s{S_T1}, s{S_CB}, 3")
        e(f"s_add_u32 s{S_T0}, s{S_T0}, s{S_T1}")
        e(f"s_add_u32 s{S_T0}, s{S_T0}, {FX_OFF + 2048:#x}")
        e("s_waitcnt lgkmcnt(0)")
        e.lg = []
        e(f"v_readfirstlane_b32 s{S_T1}, v{vt + 1}")
        e(f"s_cmp_eq_u32 s{S_T1}, 7")
        e(f"s_cbranch_scc0 {a}")
        flag_store(S_T0, vt)
        if CFG["stamp"] == 5:
            sv = list(e.vm)
            e("s_memrealtime s[0:1]")
            e("s_waitcnt lgkmcnt(0)")
            e(f"s_lshl_b32 s{S_T0}, s2, 10")
            e(f"s_add_u32 s{S_T0}, s{S_T0}, {STAMP_OFF + 7 * 4:#x}")
            e(f"v_mov_b32 v{vt}, s0")
            e(f"buffer_store_dword v{vt}, off, {sr(SWS, 4)}, s{S_T0}")
        e.label(a)

    ACC_RE, ACC_IM, ACC_A0, ACC_B0 = 24, 40, 56, 72
    FR = 88
    ER, EI, TGL, TGH = 112, 113, 114, 115
    LR, LI, L16R, L16I, CR2, CI2, CAR, CAI = range(120, 128)
    LSR, LSI, L128R, L128I = 2, 3, 9, 15
    L256R, L256I = 104, 105
    e(f"s_lshl_b32 s{S_T0}, s{S_RW}, 12")
    e(f"s_sub_u32 s{S_T0}, 16384, s{S_T0}")
    for s in range(4):
        e(f"v_add_u32 v{V_BA + s}, s{S_T0}, v{V_XA + s}")
    srd(e, SBI, P_BIM, 512 * 1024)
    for f in dma_list(1, True):
        f()
    pst(88)

    def r0_late():
        return late_setup() + [block(e, [
            f"v_lshrrev_b32 v{T2}, 5, v{V_LANE}",
            f"s_lshl_b32 s{S_T0}, s{S_RW}, 9",
            f"s_add_u32 s{S_T0}, s{S_T0}, {E_AREA}",
            f"v_and_b32 v{T0}, 31, v{V_LANE}",
            f"v_lshlrev_b32 v{V_EA}, 8, v{T2}",
            f"v_lshl_add_u32 v{V_EA}, v{T0}, 3, v{V_EA}",
            f"v_add_u32 v{V_EA}, s{S_T0}, v{V_EA}",
            f"s_or_b32 s{S_T0}, s{S_RB}, s{S_CB}",
            f"s_xor_b32 s{S_T1}, s{S_RW}, 3",
            f"s_or_b32 s{S_T0}, s{S_T0}, s{S_T1}",
            f"s_cmp_eq_u32 s{S_T0}, 0",
            "s_cbranch_scc0 K1_NOLEAD",
            "s_memrealtime s[0:1]",
            "s_waitcnt lgkmcnt(0)",
            "s_or_b32 s0, s0, 1",
            f"v_mov_b32 v{TGL}, s0",
            f"v_mov_b32 v{TGH}, s1",
            "s_mov_b64 exec, 1",
            f"buffer_store_dwordx2 {vr(TGL, 2)}, off, {sr(SDBG, 4)}, 0 sc1",
            "s_mov_b64 exec, -1",
            lambda: e.label("K1_NOLEAD")])]

    SJ = ACC_B0
    P2 = SJ + 14
    P0, P1 = CAR, CAI
    R_X0, R_X1, R_GW = SJ, SJ + 4, SJ + 8
    G0, G1 = SJ + 12, SJ + 13
    S_GR2 = 11

    def sj_loads1():
        it = []
        it.append(block(e, [
            lambda: srd(e, ST1, P_LRE, 1024), lambda: srd(e, ST2, P_LIM, 1024), lambda: srd(e, ST3, P_LDT, 1024),
            f"v_and_b32 v{T0}, 31, v{V_LANE}",
            f"s_lshl_b32 s{S_T0}, s{S_CB}, 6",
            f"v_lshl_add_u32 v{T0}, v{T0}, 1, s{S_T0}",
            lambda: e.vmem(f"buffer_load_ushort v{P0}, v{T0}, {sr(ST1, 4)}, 0 offen", "sj1"),
            lambda: e.vmem(f"buffer_load_ushort v{P1}, v{T0}, {sr(ST2, 4)}, 0 offen", "sj1"),
            lambda: e.vmem(f"buffer_load_ushort v{P2}, v{T0}, {sr(ST3, 4)}, 0 offen", "sj1")]))
        return it

    def gate_loads():
        return [block(e, [
            f"s_lshl_b32 s{S_T0}, s{S_RB}, 7",
            f"s_lshl_b32 s{S_T1}, s{S_CB}, 3",
            f"s_add_u32 s{S_T0}, s{S_T0}, s{S_T1}",
            f"s_lshl_b32 s{S_T1}, s{S_RW}, 1",
            f"s_add_u32 s{S_GR2}, s{S_T0}, s{S_T1}",
            f"s_lshl_b32 s{S_T0}, s{S_GR2}, 10",
            lambda: e.vmem(f"buffer_load_dwordx4 {vr(R_X0, 4)}, v{V_ST}, {sr(SX, 4)}, s{S_T0} offen", "gl"),
            lambda: e.vmem(f"buffer_load_dwordx4 {vr(R_X1, 4)}, v{V_ST}, {sr(SX, 4)}, s{S_T0} offen offset:1024", "gl"),
            lambda: srd(e, ST1, P_GW, 1024),
            lambda: e.vmem(f"buffer_load_dwordx4 {vr(R_GW, 4)}, v{V_ST}, {sr(ST1, 4)}, 0 offen", "gl")])]

    def cmul(dr, di, ar_, ai, br, bi, t):
        return [f"v_mul_f32 v{t}, v{ai}, v{bi}",
                f"v_mul_f32 v{t + 1}, v{ar_}, v{bi}",
                f"v_fma_f32 v{t}, v{ar_}, v{br}, -v{t}",
                f"v_fma_f32 v{di}, v{ai}, v{br}, v{t + 1}",
                f"v_mov_b32 v{dr}, v{t}"]

    def params1():
        it = [lambda: e.wait_vm("sj1")]
        tt = T0
        it += [f"v_lshlrev_b32 v{P0}, 16, v{P0}",
               f"v_lshlrev_b32 v{P1}, 16, v{P1}",
               f"v_lshlrev_b32 v{P2}, 16, v{P2}",
               f"v_mul_f32 v{P2}, {LOG2E:#x}, v{P2}",
               f"v_exp_f32 v{P2}, v{P2}",
               "s_nop 0",
               f"v_cvt_pk_bf16_f32 v{P2}, v{P2}, v{P2}",
               f"v_lshlrev_b32 v{P2}, 16, v{P2}",
               f"v_mul_f32 v{tt}, v{P2}, v{P0}",
               f"v_mul_f32 v{tt + 1}, v{P2}, v{P1}",
               f"v_mul_f32 v{tt}, {LOG2E:#x}, v{tt}",
               f"v_mul_f32 v{tt + 1}, 0.15915494, v{tt + 1}",
               f"v_exp_f32 v{tt}, v{tt}",
               f"v_rndne_f32 v{tt + 2}, v{tt + 1}",
               f"v_sub_f32 v{tt + 1}, v{tt + 1}, v{tt + 2}",
               f"v_cos_f32 v{LR}, v{tt + 1}",
               f"v_sin_f32 v{LI}, v{tt + 1}",
               f"v_mul_f32 v{tt + 2}, v{P0}, v{P0}",
               f"v_mul_f32 v{LR}, v{LR}, v{tt}",
               f"v_mul_f32 v{LI}, v{LI}, v{tt}",
               f"v_fmac_f32 v{tt + 2}, v{P1}, v{P1}",
               f"v_add_f32 v{tt}, -1.0, v{LR}",
               f"v_rcp_f32 v{tt + 2}, v{tt + 2}",
               f"v_mul_f32 v{CR2}, v{tt}, v{P0}",
               f"v_mul_f32 v{CI2}, v{LI}, v{P0}",
               f"v_fmac_f32 v{CR2}, v{LI}, v{P1}",
               f"v_fma_f32 v{CI2}, -v{tt}, v{P1}, v{CI2}",
               f"v_add_f32 v{tt + 2}, v{tt + 2}, v{tt + 2}",
               f"v_mul_f32 v{CR2}, v{CR2}, v{tt + 2}",
               f"v_mul_f32 v{CI2}, v{CI2}, v{tt + 2}"]
        it += cmul(L16R, L16I, LR, LI, LR, LI, tt)
        for _ in range(3):
            it += cmul(L16R, L16I, L16R, L16I, L16R, L16I, tt)
        return it

    def gate_compute():
        it = [lambda: e.wait_vm("gl")]
        wl, wh, a0, a1 = T0, T1, T2, T3
        it += [f"v_mov_b32 v{G0}, 0", f"v_mov_b32 v{G1}, 0"]
        for d in range(4):
            it += [f"v_lshlrev_b32 v{wl}, 16, v{R_GW + d}",
                   f"v_and_b32 v{wh}, 0xffff0000, v{R_GW + d}"]
            for rx, g in ((R_X0, G0), (R_X1, G1)):
                it += [f"v_lshlrev_b32 v{a0}, 16, v{rx + d}",
                       f"v_and_b32 v{a1}, 0xffff0000, v{rx + d}",
                       f"v_mul_f32 v{a0}, v{a0}, v{wl}",
                       f"v_mul_f32 v{a1}, v{a1}, v{wh}",
                       f"v_cvt_pk_bf16_f32 v{a0}, v{a0}, v{a1}",
                       f"v_and_b32 v{a1}, 0xffff0000, v{a0}",
                       f"v_lshlrev_b32 v{a0}, 16, v{a0}",
                       f"v_add_f32 v{g}, v{g}, v{a1}",
                       f"v_add_f32 v{g}, v{g}, v{a0}"]
        for d in ("row_shr:1 row_mask:0xf bank_mask:0xf", "row_shr:2 row_mask:0xf bank_mask:0xf",
                  "row_shr:4 row_mask:0xf bank_mask:0xf", "row_shr:8 row_mask:0xf bank_mask:0xf",
                  "row_bcast:15 row_mask:0xa bank_mask:0xf", "row_bcast:31 row_mask:0xc bank_mask:0xf"):
            it += ["s_nop 1",
                   f"v_add_f32_dpp v{G0}, v{G0}, v{G0} {d}",
                   f"v_add_f32_dpp v{G1}, v{G1}, v{G1} {d}"]
        it.append(block(e, ["s_nop 1",
                            f"v_readlane_b32 s{S_T0}, v{G0}, 63",
                            f"v_readlane_b32 s{S_T1}, v{G1}, 63",
                            "s_nop 1",
                            f"v_mov_b32 v{a0}, s{S_T0}",
                            f"v_writelane_b32 v{a0}, s{S_T1}, 1"]))
        it += ["s_nop 0",
               f"v_cvt_pk_bf16_f32 v{a0}, v{a0}, v{a0}",
               f"v_lshlrev_b32 v{a0}, 16, v{a0}",
               f"v_mul_f32 v{a0}, s{S_NL2E}, v{a0}",
               f"v_exp_f32 v{a0}, v{a0}",
               f"v_lshlrev_b32 v{wl}, 3, v{V_LANE}",
               f"v_add_f32 v{a0}, 1.0, v{a0}",
               f"v_cmp_gt_u32 vcc, 2, v{V_LANE}",
               f"v_rcp_f32 v{a0}, v{a0}",
               f"v_mov_b32 v{wh}, {OOB}",
               f"v_cvt_pk_bf16_f32 v{a0}, v{a0}, v{a0}",
               f"v_cndmask_b32 v{wl}, v{wh}, v{wl}, vcc",
               f"v_lshlrev_b32 v{a0}, 16, v{a0}",
               f"v_sub_f32 v{a1}, 1.0, v{a0}",
               f"v_cvt_pk_bf16_f32 v{a1}, v{a1}, v{a1}",
               f"v_lshlrev_b32 v{a1}, 16, v{a1}"]
        it.append(block(e, [
            f"s_lshl_b32 s{S_T0}, s{S_GR2}, 3",
            f"s_add_u32 s{S_T0}, s{S_T0}, {G_OFF:#x}",
            lambda: e.vmem(f"buffer_store_dwordx2 {vr(a0, 2)}, v{wl}, {sr(SWS, 4)}, s{S_T0} offen {CFG['st_flag']}", "st")]))
        return it

    def params2():
        tt = T0
        it = [f"v_cmp_lt_u32 vcc, 31, v{V_LANE}",
              f"v_mov_b32 v{LSI}, 0",
              f"v_mov_b32 v{LSR}, 1.0",
              f"v_cndmask_b32 v{LSI}, v{LSI}, v{L16I}, vcc",
              f"v_cndmask_b32 v{LSR}, v{LSR}, v{L16R}, vcc"]
        it += cmul(L128R, L128I, L16R, L16I, L16R, L16I, tt)
        for bit in range(2):
            it += cmul(ER, EI, LSR, LSI, L128R, L128I, tt)
            it.append(block(e, [f"s_bitcmp1_b32 s{S_RW}, {bit}", "s_cselect_b64 vcc, -1, 0"]))
            it += ["s_nop 1",
                   f"v_cndmask_b32 v{LSR}, v{LSR}, v{ER}, vcc",
                   f"v_cndmask_b32 v{LSI}, v{LSI}, v{EI}, vcc"]
            it += cmul(L128R, L128I, L128R, L128I, L128R, L128I, tt)
        return it

    class Role0:
        pf = False
        dma = True

        @staticmethod
        def reads(n):
            st = steps[n]
            C = chunk_of(st)
            lo = (C % 2) * SLOT
            s = st[2]
            tg = lambda: toggle(C, [V_XA + i for i in range(4)] + [V_BA + i for i in range(4)] + [V_WB], [V_WA]) if s == 0 else None
            if st[0] == "A":
                fb = FR + 12 * (n % 2)
                return [lambda: (tg(), e.ds(f"ds_read_b128 {ar(4 * n, 4)}, v{V_XA + s} offset:{lo}", ("rd", n)),
                                 e.ds(f"ds_read_b128 {vr(fb, 4)}, v{V_BA + s} offset:{lo}", ("rd", n))),
                        lambda: e.ds(f"ds_read_b128 {vr(fb + 4, 4)}, v{V_BA + s} offset:{lo + 4096}", ("rd", n)),
                        lambda: rd_wb(fb + 8, V_WB, lo, s, n)]
            return [lambda: (tg(), rd_wa(FR + 12 * (n % 2), 0, lo, s, n))]

        @staticmethod
        def mfmas(n):
            st = steps[n]
            fb = FR + 12 * (n % 2)
            if st[0] == "A":
                return [lambda: mf(ACC_RE, ar(4 * n, 4), vr(fb, 4), n == 0),
                        lambda: mf(ACC_IM, ar(4 * n, 4), vr(fb + 4, 4), n == 0),
                        lambda: mf(ACC_A0, vr(fb + 8, 4), ar(4 * n, 4), n == 0)]
            k = n - 32
            return [lambda: mf(ACC_B0, vr(fb, 4), ar(4 * k, 4), k == 0)]

    def horner(dst, src, lam, add):
        e(f"v_fma_f32 v{dst[0]}, v{lam[0]}, v{src[0]}, v{add[0]}")
        e(f"v_fma_f32 v{dst[1]}, v{lam[0]}, v{src[1]}, v{add[1]}")
        e(f"v_fma_f32 v{dst[0]}, -v{lam[1]}, v{src[1]}, v{dst[0]}")
        e(f"v_fma_f32 v{dst[1]}, v{lam[1]}, v{src[0]}, v{dst[1]}")

    def ssm_p1q():
        it = [f"v_mov_b32 v{T2}, 0", f"v_mov_b32 v{T3}, 0",
              lambda: e.ds(f"ds_write_b64 v{V_EA}, {vr(T2, 2)}", "e"),
              f"v_mov_b32 v{V_WDA}, {CNT_ADDR}",
              lambda: e.ds(f"ds_write_b64 v{V_WDA}, {vr(T2, 2)}", "e"),
              "s_nop 7"]
        pa, pb = (ER, EI), (T0, T1)
        cur = (ACC_RE, ACC_IM)
        for i in range(1, 16):
            d = pa if i % 2 else pb
            it += [f"v_fma_f32 v{d[0]}, v{LR}, v{cur[0]}, v{ACC_RE + i}",
                   f"v_fma_f32 v{d[1]}, v{LR}, v{cur[1]}, v{ACC_IM + i}",
                   f"v_fma_f32 v{d[0]}, -v{LI}, v{cur[1]}, v{d[0]}",
                   f"v_fma_f32 v{d[1]}, v{LI}, v{cur[0]}, v{d[1]}"]
            cur = d
        it.append(lambda: e.ds(f"ds_write_b64 v{V_EA}, {vr(ER, 2)} offset:2048", "e"))
        it.append(block(e, [f"s_lshl_b32 s{S_T0}, s{S_CB}, 13",
                            f"s_add_u32 s{S_T0}, s{S_T0}, {T_OFF:#x}",
                            f"s_add_u32 s{ST}, s{P_WS}, s{S_T0}",
                            f"s_addc_u32 s{ST + 1}, s{P_WS + 1}, 0",
                            f"s_mov_b32 s{ST + 2}, 8192",
                            f"s_mov_b32 s{ST + 3}, 0x00020000"]))
        e.q(*it)

    def ssm_p12():
        e.flush()
        ssm_p1q()
        e.flush()
        e.wait_lg_all()
        e("s_barrier")
        ssm_p2()

    def ssm_p2():
        regs = [92, 94, 96, 98, 104, 106, 108]
        for j in range(6, -1, -1):
            e.ds(f"ds_read_b64 {vr(regs[j], 2)}, v{V_EA} offset:{2048 - 256 * (j + 1)}", ("pe", j))
        e(f"v_lshlrev_b32 v{T2}, 4, v{V_LANE}")
        e(f"s_lshl_b32 s{S_T0}, s{S_RB}, 9")
        e(f"s_sub_u32 s{S_T0}, s{S_T0}, 512")
        e(f"v_add_u32 v{T2}, s{S_T0}, v{T2}")
        tag_check(TGL)
        pa, pb = (CAR, CAI), (T0, T1)
        cur = (regs[6], regs[6] + 1)
        for j in range(5, -1, -1):
            e.wait_lg(("pe", j))
            dst = pa if j % 2 == 0 else pb
            horner(dst, cur, (L16R, L16I), (regs[j], regs[j] + 1))
            cur = dst
        assert cur == pa
        e(f"s_cmp_eq_u32 s{S_RW}, 3")
        e("s_cbranch_scc0 K1_NOPUB")
        e(f"s_cmp_eq_u32 s{S_RB}, 15")
        e("s_cbranch_scc1 K1_NOPUB")
        e(f"v_fma_f32 v{ER}, v{L16R}, v{CAR}, v{ER}")
        e(f"v_fma_f32 v{EI}, v{L16R}, v{CAI}, v{EI}")
        e(f"v_fma_f32 v{ER}, -v{L16I}, v{CAI}, v{ER}")
        e(f"v_fma_f32 v{EI}, v{L16I}, v{CAR}, v{EI}")
        e("s_mov_b32 exec_lo, 0")
        e(f"buffer_store_dwordx4 {vr(ER, 4)}, v{T2}, {sr(ST, 4)}, 0 offen sc1")
        e("s_mov_b32 exec_lo, -1")
        e.label("K1_NOPUB")
        stamp(e, 6, f"s{S_W}", V_SV, SWS)
        e.q(*glu_epilogue(ACC_A0, 3))
        e.q(*cmul(L256R, L256I, L128R, L128I, L128R, L128I, T0))

    V_TO, V_LIM = 18, 19

    V_TT = 20

    def t_loads():
        out = [f"v_mov_b32 v{V_TT}, v{V_TO}"]
        for m in range(8):
            out.append(f"buffer_load_dwordx4 {ar(4 * m, 4)}, v{V_TT}, {sr(ST, 4)}, 0 offen sc1")
            if m < 7:
                out.append(f"v_subrev_u32 v{V_TT}, 1024, v{V_TT}")
        return out

    def t_first():
        e(f"v_lshrrev_b32 v{V_TT}, 5, v{V_LANE}")
        e(f"v_and_b32 v{V_TO}, 31, v{V_LANE}")
        e(f"v_lshlrev_b32 v{V_TO}, 4, v{V_TO}")
        e(f"v_sub_u32 v{V_LIM}, s{S_RB}, v{V_TT}")
        e(f"v_lshl_add_u32 v{V_TO}, v{V_LIM}, 9, v{V_TO}")
        e(f"v_subrev_u32 v{V_TO}, 512, v{V_TO}")
        for l in t_loads():
            if l.startswith("buffer"):
                e.vmem(l, "t")
            else:
                e(l)

    def ssm_p3():
        e.flush()
        e(f"v_mov_b32 v{ER}, 0")
        e(f"v_mov_b32 v{EI}, 0")
        e(f"s_cmp_eq_u32 s{S_RB}, 0")
        e("s_cbranch_scc1 K1_NOG")
        e(f"s_mov_b32 s{S_SO}, 0x40000")
        TB = ACC_A0
        e.wait_vm("t")
        e.label("K1_CHECK")
        e("s_mov_b64 s[0:1], 0")
        for m in range(8):
            e(f"v_accvgpr_read_b32 v{T0}, a{4 * m + 2}")
            e(f"v_accvgpr_read_b32 v{T1}, a{4 * m + 3}")
            e(f"v_accvgpr_read_b32 v{TB + 2 * m}, a{4 * m}")
            e(f"v_accvgpr_read_b32 v{TB + 2 * m + 1}, a{4 * m + 1}")
            e(f"v_cmp_ne_u64 {sr(ST1, 2)}, {vr(T0, 2)}, {vr(TGL, 2)}")
            e(f"v_cmp_lt_i32 vcc, {2 * m}, v{V_LIM}")
            e(f"s_and_b64 {sr(ST1, 2)}, {sr(ST1, 2)}, vcc")
            e(f"s_or_b64 s[0:1], s[0:1], {sr(ST1, 2)}")
        e("s_cmp_eq_u64 s[0:1], 0")
        e("s_cbranch_scc1 K1_GOT")
        e(f"s_sub_u32 s{S_SO}, s{S_SO}, 1")
        e(f"s_cmp_eq_u32 s{S_SO}, 0")
        e("s_cbranch_scc1 K1_GOT")
        e("s_sleep 1")
        for l in t_loads():
            e(l)
        e("s_waitcnt vmcnt(0)")
        e("s_branch K1_CHECK")
        e.label("K1_GOT")
        pa, pb = (ER, EI), (T0, T1)
        cur = (TB + 14, TB + 15)
        for m in range(6, -1, -1):
            dst = pa if m % 2 == 0 else pb
            horner(dst, cur, (L256R, L256I), (TB + 2 * m, TB + 2 * m + 1))
            cur = dst
        assert cur == pa
        e(f"v_mov_b32 v{T0}, v{ER}")
        e(f"v_mov_b32 v{T1}, v{EI}")
        e("s_nop 1")
        e(f"v_permlane32_swap_b32 v{ER}, v{T0}")
        e(f"v_permlane32_swap_b32 v{EI}, v{T1}")
        e("s_nop 0")
        e(f"v_fma_f32 v{ER}, v{L128R}, v{T0}, v{ER}")
        e(f"v_fma_f32 v{EI}, v{L128R}, v{T1}, v{EI}")
        e(f"v_fma_f32 v{ER}, -v{L128I}, v{T1}, v{ER}")
        e(f"v_fma_f32 v{EI}, v{L128I}, v{T0}, v{EI}")
        e.label("K1_NOG")
        e(f"v_fma_f32 v{CAR}, v{LSR}, v{ER}, v{CAR}")
        e(f"v_fma_f32 v{CAI}, v{LSR}, v{EI}, v{CAI}")
        e(f"v_fma_f32 v{CAR}, -v{LSI}, v{EI}, v{CAR}")
        e(f"v_fma_f32 v{CAI}, v{LSI}, v{ER}, v{CAI}")
        real_e = e.__class__.__call__
        buf = []

        hr, hi = CAR, CAI
        k_ = buf.append

        CC = vr(CR2, 2)

        def outx(k):
            re, im = vr(ACC_RE + k, 2), vr(ACC_IM + k, 2)
            k_(f"v_pk_mul_f32 {vr(T0, 2)}, {CC}, {im} op_sel:[1,0] op_sel_hi:[1,1]")
            k_(f"v_pk_mul_f32 {vr(T2, 2)}, {CC}, {re} op_sel:[1,0] op_sel_hi:[1,1]")
            k_(f"v_pk_fma_f32 {re}, {CC}, {re}, {vr(T0, 2)} op_sel_hi:[0,1,1] neg_lo:[0,0,1] neg_hi:[0,0,1]")
            k_(f"v_pk_fma_f32 {im}, {CC}, {im}, {vr(T2, 2)} op_sel_hi:[0,1,1] neg_lo:[1,0,1] neg_hi:[1,0,1]")
        for i in range(16):
            k_(f"v_fma_f32 v{ACC_RE + i}, v{LR}, v{hr}, v{ACC_RE + i}")
            k_(f"v_fma_f32 v{ACC_IM + i}, v{LR}, v{hi}, v{ACC_IM + i}")
            k_(f"v_fma_f32 v{ACC_RE + i}, -v{LI}, v{hi}, v{ACC_RE + i}")
            k_(f"v_fma_f32 v{ACC_IM + i}, v{LI}, v{hr}, v{ACC_IM + i}")
            if i >= 2 and i % 2 == 0:
                outx(i - 2)
            hr, hi = ACC_RE + i, ACC_IM + i
        outx(14)
        for base in (ACC_RE, ACC_IM):
            for i in range(8):
                k_(f"v_cvt_pk_bf16_f32 v{base + i}, v{base + 2 * i}, v{base + 2 * i + 1}")
        FO = ACC_A0
        k_(f"s_mul_i32 s{S_SLT}, s{S_RW}, {SLOT}")
        k_(f"s_add_u32 s{S_SLT}, s{S_SLT}, {TR_BUF}")
        k_(f"v_and_b32 v{T0}, 31, v{V_LANE}")
        k_(f"v_lshlrev_b32 v{T0}, 6, v{T0}")
        k_(f"v_lshrrev_b32 v{T1}, 5, v{V_LANE}")
        k_(f"v_lshl_add_u32 v{T0}, v{T1}, 5, v{T0}")
        k_(f"v_add_u32 v{T0}, s{S_SLT}, v{T0}")
        for src, off in ((ACC_RE, 0), (ACC_RE + 4, 16), (ACC_IM, 2048), (ACC_IM + 4, 2064)):
            k_(lambda src=src, off=off: e.ds(f"ds_write_b128 v{T0}, {vr(src, 4)} offset:{off}", "trw"))
        k_(f"v_bfe_u32 v{T2}, v{V_LANE}, 2, 2")
        k_(f"v_lshl_add_u32 v{T2}, v{T1}, 3, v{T2}")
        k_(f"v_lshlrev_b32 v{T2}, 6, v{T2}")
        k_(f"v_and_b32 v{T3}, 1, v{V_LANE}")
        k_(f"v_lshl_add_u32 v{T2}, v{T3}, 5, v{T2}")
        k_(f"v_bfe_u32 v{T3}, v{V_LANE}, 1, 1")
        k_(f"v_lshl_add_u32 v{T2}, v{T3}, 3, v{T2}")
        k_(f"v_bfe_u32 v{T3}, v{V_LANE}, 4, 1")
        k_(f"v_lshl_add_u32 v{T2}, v{T3}, 4, v{T2}")
        k_(f"v_add_u32 v{T2}, s{S_SLT}, v{T2}")
        k_(lambda: e.wait_lg("trw"))
        for q in range(4):
            for u in range(2):
                k_(lambda q=q, u=u: e.ds(f"ds_read_b64_tr_b16 {vr(FO + 4 * q + 2 * u, 2)}, v{T2} offset:{(q >> 1) * 2048 + (q & 1) * 1024 + u * 256}", ("trr", q)))
        for q in range(4):
            k_(block(e, [lambda q=q: e.wait_lg(("trr", q)), f"s_add_u32 s{S_SO}, s{S_A2S}, {q * 2048}",
                         lambda q=q: e.vmem(f"buffer_store_dwordx4 {vr(FO + 4 * q, 4)}, v{V_ST}, {sr(SWS, 4)}, s{S_SO} offen {CFG['st_flag']}", "st")]))
        e.q(*buf)

    V_CO = 22
    ORD0 = [(2 * m + gg, 2 * P + cc) for m in range(2) for P in range(2) for cc in range(2) for gg in range(2)]
    SEQ0 = [(S_A2X, 4 * c + g) for g, c in ORD0]

    V_CR = 60 if CFG['cint'] < 8 else 104

    def c_setup():
        flush_dma(11)
        p2_setup_common()
        srd(e, SW2, P_CRE, 512 * 1024)
        srd(e, SW2B, P_CIM, 512 * 1024)
        e(f"v_lshrrev_b32 v{V_TT}, 3, v{V_LANE}")
        e(f"v_lshlrev_b32 v{V_CO}, 10, v{V_TT}")
        e(f"v_lshrrev_b32 v{V_TT}, 1, v{V_TT}")
        e(f"v_xor_b32 v{V_TT}, v{V_TT}, v{V_LANE}")
        e(f"v_and_b32 v{V_TT}, 7, v{V_TT}")
        e(f"v_lshl_add_u32 v{V_CO}, v{V_TT}, 4, v{V_CO}")
        e(f"v_xor_b32 v{V_CO + 1}, 64, v{V_CO}")
        e(f"v_add_u32 v{V_CO + 1}, 7168, v{V_CO + 1}")
        e(f"s_lshl_b32 s{S_W2O}, s{S_NP}, 16")
        e(f"s_lshl_b32 s{S_T0}, s{S_RW}, 8")
        e(f"s_add_u32 s{S_W2O}, s{S_W2O}, s{S_T0}")
        e(f"s_lshl_b32 s{S_A2X}, s{S_RW}, 15")
        e(f"s_lshr_b32 s{S_T0}, s{S_RW}, 1")
        e(f"s_mul_i32 s{S_A2Y}, s{S_T0}, {SLOT}")
        e(f"s_and_b32 s{S_T0}, s{S_RW}, 1")
        e(f"s_mul_i32 s{S_T0}, s{S_T0}, 12288")
        e(f"s_add_u32 s{S_A2Y}, s{S_A2Y}, s{S_T0}")

    def c_setup2():
        a, b = V_CR + 1, V_CR + 2
        e(f"v_add_u32 v{V_CO - 2}, {2 * 7168}, v{V_CO}")
        e(f"v_add_u32 v{V_CO - 1}, {2 * 7168}, v{V_CO + 1}")
        e(f"v_lshrrev_b32 v{a}, 5, v{V_LANE}")
        e(f"s_and_b32 s{S_T0}, s{S_Q}, 1")
        e(f"s_lshl_b32 s{S_T0}, s{S_T0}, 2")
        e(f"v_bfe_u32 v{b}, v{V_LANE}, 1, 3")
        e(f"v_xor_b32 v{a}, v{a}, v{b}")
        e(f"v_xor_b32 v{a}, s{S_T0}, v{a}")
        e(f"v_and_b32 v{b}, 31, v{V_LANE}")
        e(f"v_lshlrev_b32 v{b}, 7, v{b}")
        e(f"v_lshl_add_u32 v{V_CR}, v{a}, 4, v{b}")
        e(f"v_add_u32 v{V_CR}, s{S_A2Y}, v{V_CR}")
        for i in range(1, 4):
            e(f"v_xor_b32 v{V_CR + i}, {32 * i}, v{V_CR}")

    UNITS = [(m, P, nt) for m in range(2) for P in range(2) for nt in range(2)]

    def c_dma(u):
        m, P, nt = UNITS[u]
        if u >= 6:
            e.wait_lg(("cr", u - 6))
        e(f"s_add_u32 m0, s{S_A2Y}, {(PAIR if 3 <= u < 6 else 0) + (u % 3) * 4096}")
        e(f"s_add_u32 s{S_SO2}, s{S_W2O}, {P * 128 + nt * 32768}")
        for k in range(4):
            e.vmem(f"buffer_load_dwordx4 v{(V_CO, V_CO + 1, V_CO - 2, V_CO - 1)[k]}, {sr(SW2B if m else SW2, 4)}, s{S_SO2} offen offset:{k * 1024} lds", ("cd", u))

    def c_read(u):
        m, P, nt = UNITS[u]
        if u in (3, 6):
            for i in range(4):
                e(f"v_add_u32 v{V_CR + i}, {PAIR}, v{V_CR + i}" if u == 3 else f"v_subrev_u32 v{V_CR + i}, {PAIR}, v{V_CR + i}")
        e.wait_vm(("cd", u))
        for p, (g, c) in enumerate(ORD0):
            if (g >> 1, c >> 1) == (m, P):
                e.ds(f"ds_read_b128 {ar(w2_base(p) + 4 * nt, 4)}, v{V_CR + 2 * (c & 1) + (g & 1)} offset:{(u % 3) * 4096}", ("cr", u))

    hooks0 = {
        ("step", 0): lambda: (e.q(*r0_late()), e.q(*sj_loads1()), e.q(*gate_loads())),
        ("post", 3): lambda: (e.q(*params1()), e.q(*params2()), e.q(*gate_compute())),
        ("post", 5): lambda: qdma([tag_load(TGL)]),
        ("pre", 8): lambda: e.flush(),
        ("step", 32): ssm_p1q if CFG["nox"] else ssm_p12,
        ("step", CFG["tstep"]): t_first,
        ("pre", 11): lambda: (e.flush(), e.wait_vm("ste")),
        ("post", 11): ssm_p3,
    }
    chain(hooks0, ("step", 39), c_setup)
    if CFG["nox"]:
        hooks0[("pre", 9)] = lambda: (e.flush(), e.wait_lg("e"))
        hooks0[("post", 9)] = ssm_p2
    if CFG["p0"]:
        chain(hooks0, ("step", 31), lambda: e("s_setprio 2"))
    if CFG["p0"] == 2:
        chain(hooks0, ("step", 33), lambda: e("s_setprio 0"))
        prev11 = hooks0[("post", 11)]
        hooks0[("post", 11)] = lambda: (e("s_setprio 2"), prev11())
    main_loop(Role0, hooks0, CFG["fillA0"], CFG["fillB0"], (SJ + 14, 23, SJ + 15))
    stamp(e, 2, f"s{S_W}", V_SV, SWS)
    e.fill(12)
    e("s_nop 7")
    e("s_nop 3")
    e.q(*glu_epilogue(ACC_B0, 0))
    e.flush()
    stamp(e, 3, f"s{S_W}", V_SV, SWS)
    c_setup2()
    if CFG["cearly"]:
        for u in range(CFG["cearly"]):
            c_dma(u)
    finish_phase1(T0)
    stamp(e, 4, f"s{S_W}", V_SV, SWS)
    if not CFG["quiet"]:
        for u in range(CFG["cearly"], 3):
            c_dma(u)
    cnt_spin(T2)
    for u in range(CFG["cearly"] if CFG["quiet"] else 3, 6):
        c_dma(u)
    p2_epi_setup()
    CI = CFG["cint"]
    for u in range(CI):
        c_read(u)
        if u == 2:
            c_dma(6)
            c_dma(7)
        if u == min(2, CI - 1):
            p2_flag_request(1, ACC, "fx")

    def c_done():
        e.wait_lg_all()
        if CFG["ew"]:
            e(f"v_mov_b32 v{V_CO}, {CNT_ADDR + 4}")
            e(f"v_mov_b32 v{V_CO + 1}, 1")
            e("s_mov_b64 exec, 1")
            e(f"ds_add_u32 v{V_CO}, v{V_CO + 1}")
            e("s_mov_b64 exec, -1")
    V_CO_SAVE = V_CO
    if CI == 8:
        c_done()
    flag_check(ACC, ACC + 2, "fx")
    stamp(e, 22, f"s{S_W}", V_SV, SWS)
    RA0 = CFG["ra0"]
    RAV[0] = RA0
    for p in range(RA0):
        a_load(p, SEQ0)
    e.q(*xd_items())
    nu = CI
    for p in range(16):
        if p % 4 == 0:
            e.wait_lg(("cr", p // 2 + 1))
        p2_mfmas(p)
        if nu < 8 and p % 2 == 0:
            c_read(nu)
            nu += 1
            if nu == 8:
                V_CO = 58
                e.q(c_done)
        if p + RA0 < 16:
            a_load(p + RA0, SEQ0)
    RAV[0] = RA
    e.flush()
    e("s_branch K1_EPI")

    e.label("K1_ROLE1")
    e.vm = list(pro_vm)
    e.lg = []
    ACC_A = [24, 40, 56]
    ACC_B = [72, 88]
    FR1 = 104
    e(f"v_xor_b32 v{V_WB + 1}, 64, v{V_WB}")
    e(f"v_xor_b32 v{V_WB + 2}, 96, v{V_WB}")
    e(f"v_xor_b32 v{V_WB}, 32, v{V_WB}")

    if CFG["prio"]:
        e("s_setprio 1")
    if CFG["pf"] and not CFG["pfa"]:
        e(f"v_mov_b32 v{V_PFS}, 0")
    if CFG["pf"] and CFG["pfa"]:
        if CFG["pf0"]:
            pf_setup_a()
            e.vmem(f"global_load_dword v{V_DUM}, {vr(V_PFA, 2)}, off", "pf")
        e(f"s_sub_u32 s{S_T0}, 4, s{S_RW}")
        e(f"v_mul_u32_u24 v{T0}, s{S_T0}, v{V_PFS}")
        e(f"v_add_co_u32 v{V_PFA}, vcc, v{T0}, v{V_PFA}")
        e("s_nop 1")
        e(f"v_addc_co_u32 v{V_PFA + 1}, vcc, 0, v{V_PFA + 1}, vcc")
    pst(88)
    e(f"s_lshl_b32 s{S_T0}, s{S_RW}, 4")
    e(f"s_mov_b64 {sr(S_PFM, 2)}, 0xffff")
    e(f"s_lshl_b64 {sr(S_PFM, 2)}, {sr(S_PFM, 2)}, s{S_T0}")

    class Role1:
        pf = True
        dma = False

        @staticmethod
        def reads(n):
            st = steps[n]
            C = chunk_of(st)
            lo = (C % 2) * SLOT
            fb = FR1 + 12 * (n % 2)
            s = st[2]
            tg = lambda: toggle(C, [V_XA + i for i in range(4)] + [V_WB + i for i in range(3)], [V_WA]) if s == 0 else None
            if st[0] == "A":
                return [lambda: (tg(), e.ds(f"ds_read_b128 {ar(4 * n, 4)}, v{V_XA + s} offset:{lo}", ("rd", n)),
                                 rd_wb(fb, V_WB, lo, s, n)),
                        lambda: rd_wb(fb + 4, V_WB + 1, lo, s, n),
                        lambda: rd_wb(fb + 8, V_WB + 2, lo, s, n)]
            return [lambda: (tg(), rd_wa(fb, 1, lo, s, n)), lambda: rd_wa(fb + 4, 2, lo, s, n)]

        @staticmethod
        def mfmas(n):
            st = steps[n]
            fb = FR1 + 12 * (n % 2)
            if st[0] == "A":
                return [lambda j=j: mf(ACC_A[j], vr(fb + 4 * j, 4), ar(4 * n, 4), n == 0) for j in range(3)]
            k = n - 32
            return [lambda j=j: mf(ACC_B[j], vr(fb + 4 * j, 4), ar(4 * k, 4), k == 0) for j in range(2)]

    def xbar():
        tag_check(20)
        if not CFG["nox"]:
            e("s_barrier")

    def eflag():
        e(f"s_cmp_eq_u32 s{S_RW}, 0")
        e("s_cbranch_scc0 K1_NOEF")
        e(f"s_lshl_b32 s{S_T0}, s{S_RB}, 7")
        e(f"s_lshl_b32 s{S_T1}, s{S_CB}, 3")
        e(f"s_add_u32 s{S_T0}, s{S_T0}, s{S_T1}")
        e(f"s_add_u32 s{S_T0}, s{S_T0}, {FX_OFF:#x}")
        flag_store(S_T0, 20)
        e.label("K1_NOEF")
    V_SD, V_SR = 17, 18
    SEQ1 = [(S_A2X, i) for i in range(16)] + [(S_A2Y, i) for i in range(12)]
    V_SD2 = 59
    S_WDX, S_WDY = S_Q, S_GROW

    def s_setup():
        p2_setup_common()
        srd(e, SW2, P_WD, 1792 * 1024)
        e(f"v_lshrrev_b32 v{V_SR}, 3, v{V_LANE}")
        e(f"v_and_b32 v{V_SR + 1}, 7, v{V_LANE}")
        e(f"v_lshlrev_b32 v{V_SD}, 10, v{V_SR}")
        e(f"v_and_b32 v{V_SR}, 2, v{V_SR}")
        e(f"v_lshlrev_b32 v{V_SR}, 1, v{V_SR}")
        e(f"v_xor_b32 v{V_SR + 1}, v{V_SR + 1}, v{V_SR}")
        e(f"v_lshl_add_u32 v{V_SD}, v{V_SR + 1}, 4, v{V_SD}")
        e(f"s_lshl_b32 s{S_T0}, s{S_NP}, 7")
        e(f"v_add_u32 v{V_SD}, s{S_T0}, v{V_SD}")
        e(f"s_mul_i32 s{S_W2O}, s{S_RW}, {SLOT}")
        e(f"s_add_u32 s{S_W2O}, s{S_W2O}, {STG}")
        e(f"v_lshrrev_b32 v{V_SR}, 5, v{V_LANE}")
        e(f"v_lshlrev_b32 v{V_SR}, 9, v{V_SR}")
        e(f"v_bfe_u32 v{V_SR + 1}, v{V_LANE}, 2, 2")
        e(f"v_lshl_add_u32 v{V_SR}, v{V_SR + 1}, 7, v{V_SR}")
        e(f"v_bfe_u32 v{V_SR + 1}, v{V_LANE}, 3, 1")
        e(f"v_lshl_add_u32 v{V_SR}, v{V_SR + 1}, 6, v{V_SR}")
        e(f"v_bfe_u32 v{V_SR + 1}, v{V_LANE}, 4, 1")
        e(f"v_lshl_add_u32 v{V_SR}, v{V_SR + 1}, 5, v{V_SR}")
        e(f"v_and_b32 v{V_SR + 1}, 3, v{V_LANE}")
        e(f"v_lshl_add_u32 v{V_SR}, v{V_SR + 1}, 3, v{V_SR}")
        e(f"v_add_u32 v{V_SR}, s{S_W2O}, v{V_SR}")
        e(f"v_xor_b32 v{V_SR + 1}, 64, v{V_SR}")
        e(f"s_lshl_b32 s{S_A2X}, s{S_RW}, 15")
        e(f"s_add_u32 s{S_A2X}, s{S_A2X}, {64 * 2048}")
        e(f"s_mul_i32 s{S_A2Y}, s{S_RW}, {12 * 2048}")
        e(f"s_add_u32 s{S_A2Y}, s{S_A2Y}, {128 * 2048}")
        e(f"s_lshl_b32 s{S_WDX}, s{S_RW}, 18")
        e(f"s_mul_i32 s{S_WDY}, s{S_RW}, {12 * 16384}")
        e(f"s_add_u32 s{S_WDY}, s{S_WDY}, {64 * 16384}")
        e(f"v_add_u32 v{V_SD2}, {8192 - 1024}, v{V_SD}")

    hooks1 = {("step", CFG["xbar1"]): xbar,
              ("step", 0): lambda: e.q(*late_setup()),
              ("post", 5): lambda: qdma([tag_load(20)]),
              ("step", 33): lambda: [e.q(*glu_epilogue(ACC_A[j], 4 + j)) for j in range(3)],
              ("pre", 11): lambda: (e.flush(), e.wait_vm("ste")),
              ("post", 11): eflag}
    PORD = [12, 13, 14, 15] + list(range(12))
    state = dict(nd=0, nr=0)

    def stage_tick(n):
        nr, nd = state["nr"], state["nd"]
        if nr < 16 and nr + CFG["stgd"] <= nd and w2_ready_step(PORD[nr]) <= n and n >= CFG["rstep"]:
            s_read_slot(PORD[nr], nr)
            state["nr"] += 1
        if nd < 28 and nd < state["nr"] + NSTG - 1 and (n < CFG["dstop"] or n > 64):
            s_dma_slot(SP(nd), nd)
            state["nd"] += 1

    def SP(k):
        return PORD[k] if k < 16 else k

    def s_dma_slot(p, k):
        if k >= NSTG:
            e.wait_lg(("sr", k - NSTG))
        base_s, idx = SEQ1[p]
        e(f"s_add_u32 m0, s{S_W2O}, {(k % NSTG) * 2048}")
        e(f"s_add_u32 s{S_SO2}, s{S_WDX if p < 16 else S_WDY}, {idx * 16384}")
        e.vmem(f"buffer_load_dwordx4 v{V_SD}, {sr(SW2, 4)}, s{S_SO2} offen lds", ("sd", k))
        e.vmem(f"buffer_load_dwordx4 v{V_SD2}, {sr(SW2, 4)}, s{S_SO2} offen offset:1024 lds", ("sd", k))

    def s_read_slot(p, k):
        e.wait_vm(("sd", k))
        b = w2_base(p)
        for nt in range(2):
            for u in range(2):
                e.ds(f"ds_read_b64_tr_b16 {ar(b + 4 * nt + 2 * u, 2)}, v{V_SR + nt} offset:{(k % NSTG) * 2048 + u * 1024}", ("sr", k))

    chain(hooks1, ("step", CFG["wstep"]), lambda: (e.flush(), s_setup()))
    for n in range(CFG["wstep"], 64):
        chain(hooks1, ("step", n), lambda n=n: stage_tick(n))
    main_loop(Role1, hooks1, CFG["fillA1"], CFG["fillB1"], (9, 22, 23))
    e.flush()
    stamp(e, 2, f"s{S_W}", V_SV, SWS)
    p2_flag_request(0, 20, "fe")
    stage_tick(64)
    e("s_nop 7")
    e("s_nop 3")
    for j in range(2):
        e.q(*glu_epilogue(ACC_B[j], 1 + j))
    while e.fill_q:
        e.fill(12)
        stage_tick(64)
    stamp(e, 3, f"s{S_W}", V_SV, SWS)
    p2_epi_setup()
    finish_phase1(60)
    stamp(e, 4, f"s{S_W}", V_SV, SWS)
    if CFG["quiet"]:
        cnt_spin(60)
    flag_check(20, 22, "fe")
    stamp(e, 22, f"s{S_W}", V_SV, SWS)
    for p in range(RA):
        a_load(p, SEQ1)
    while state["nr"] < 16:
        stage_tick(65)
    e.q(*xd_items())
    KOF = {p: k for k, p in enumerate(PORD)}
    for p in range(28):
        e.wait_lg(("sr", KOF.get(p, p)))
        p2_mfmas(p)
        if p + 16 < 28:
            while state["nd"] <= p + 16:
                s_dma_slot(state["nd"], state["nd"])
                state["nd"] += 1
            s_read_slot(p + 16, p + 16)
            state["nr"] += 1
            if state["nd"] < 28:
                s_dma_slot(state["nd"], state["nd"])
                state["nd"] += 1
        if p == CFG["lreq"]:
            p2_flag_request(1, 60, "fl")
        if p + RA == 16:
            flag_check(60, 62, "fl")
            stamp(e, 26, f"s{S_W}", V_SV, SWS)
        if p + RA < 28:
            a_load(p + RA, SEQ1)
    e.flush()

    def write_partial():
        for qd in range(4):
            for g4 in range(4):
                e.ds(f"ds_write_b128 v{V_LW}, {vr(ACC + 16 * qd + 4 * g4, 4)} offset:{qd * 4096 + g4 * 1024}", "pw")

    if CFG["ew"]:
        a_ = lab("CNT2")
        e(f"v_mov_b32 v{RING}, {CNT_ADDR + 4}")
        e.label(a_)
        e(f"ds_read_b32 v{RING + 1}, v{RING}")
        e("s_waitcnt lgkmcnt(0)")
        e(f"v_readfirstlane_b32 s{S_T0}, v{RING + 1}")
        e(f"s_cmp_lt_u32 s{S_T0}, 4")
        e(f"s_cbranch_scc1 {a_}")
        e("s_nop 5")
        write_partial()
    e.label("K1_EPI")
    e.vm = []
    e.lg = []
    stamp(e, 23, f"s{S_W}", V_SV, SWS)
    e(f"s_mov_b32 s{S_T0}, {G_OFF:#x}")
    e.vmem(f"buffer_load_dwordx2 {vr(V_G, 2)}, v{V_GO}, {sr(SWS, 4)}, s{S_T0} offen sc1", "g")
    e(f"s_lshl_b32 s{S_T0}, s{S_RW}, 12")
    e(f"s_lshl_b32 s{S_T1}, s{S_CW}, 11")
    e(f"s_add_u32 s{S_T0}, s{S_T0}, s{S_T1}")
    e(f"v_add_u32 v{RING}, s{S_T0}, v{V_ST}")
    e(f"v_add_u32 v{RING + 1}, {PAIR if CFG['ew'] else 65536}, v{RING}")
    e("s_nop 5")
    e("s_barrier")
    if CFG["ew"]:
        e(f"s_cmp_eq_u32 s{S_CW}, 0")
        e("s_cbranch_scc0 K1_WROTE")
    write_partial()
    e.label("K1_WROTE")
    e("s_waitcnt lgkmcnt(0)")
    e.lg = []
    e("s_barrier")
    stamp(e, 24, f"s{S_W}", V_SV, SWS)

    def paddr(s_, a):
        if CFG["ew"]:
            return f"v{RING + ((s_ & 3) >> 1)} offset:{(s_ & 1) * SLOT + (16384 if s_ < 4 else 0) + a * 1024}"
        return f"v{RING if s_ < 4 else RING + 1} offset:{(s_ % 4) * 16384 + a * 1024}"
    for a in range(2):
        for s_ in range(8):
            e.ds(f"ds_read_b128 {vr(ACC + 32 * a + 4 * s_, 4)}, {paddr(s_, a)}", ("pr", a))
    for a in range(2):
        P = [ACC + 32 * a + 4 * s_ for s_ in range(8)]
        e(f"s_waitcnt lgkmcnt({8 * (1 - a)})")
        for b in range(4):
            e(f"v_add_f32 v{P[0] + b}, v{P[0] + b}, v{P[1] + b}")
            e(f"v_add_f32 v{P[2] + b}, v{P[2] + b}, v{P[3] + b}")
            e(f"v_add_f32 v{P[4] + b}, v{P[4] + b}, v{P[5] + b}")
            e(f"v_add_f32 v{P[6] + b}, v{P[6] + b}, v{P[7] + b}")
        for b in range(4):
            xdr = (V_XX if b % 2 == 0 else V_DD) + 2 * a + (b >> 1)
            e(f"v_add3_f32_placeholder")
            e.lines.pop()
            e(f"v_add_f32 v{P[0] + b}, v{P[0] + b}, v{xdr}")
            e(f"v_add_f32 v{P[4] + b}, v{P[4] + b}, v{P[6] + b}")
        for b in range(4):
            e(f"v_add_f32 v{P[0] + b}, v{P[0] + b}, v{P[2] + b}")
        if a == 0:
            e.wait_vm("g")
        for b in range(4):
            e(f"v_mul_f32 v{P[0] + b}, v{P[0] + b}, v{V_G}")
        for b in range(4):
            e(f"v_fmac_f32 v{P[0] + b}, v{P[4] + b}, v{V_G + 1}")
        e(f"buffer_store_dwordx4 {vr(P[0], 4)}, v{V_OO}, {sr(SOUT, 4)}, 0 offen offset:{32 * a}")
    stamp(e, 25, f"s{S_W}", V_SV, SWS)
    stamp(e, 21, f"s{S_W}", V_SV, SWS)
    e.label("K1_END")
    e("s_endpgm")
    return e.text()


def kd(name, nv, acc, ns=102):
    return f""".p2align 6
.amdhsa_kernel {name}
  .amdhsa_next_free_vgpr {nv}
  .amdhsa_next_free_sgpr {ns}
  .amdhsa_accum_offset {acc}
  .amdhsa_group_segment_fixed_size 0
  .amdhsa_kernarg_size 136
  .amdhsa_user_sgpr_count 2
  .amdhsa_user_sgpr_kernarg_segment_ptr 1
  .amdhsa_system_sgpr_workgroup_id_x 1
.end_amdhsa_kernel"""


out = [hdr.rstrip(),
       f"; @launch grid=(256,1,1) block=(512,1,1) lds={K1_LDS}",
       '.amdgcn_target "amdgcn-amd-amdhsa--gfx950"',
       ".text",
       gen_k1(),
       '.section .rodata,"a"',
       kd(KN, 256, 128)]
print("\n".join(out))
```
